```python
import torch

def _softmax(x, axis=-1):
    return torch.softmax(x, dim=axis)
def _gelu(x):
    return torch.nn.functional.gelu(x, approximate="tanh")
def _silu(x):
    return torch.nn.functional.silu(x)
def _sigmoid(x):
    return torch.sigmoid(x)
def _layernorm(x, axis=-1, eps=1e-5):
    m = x.mean(dim=axis, keepdim=True)
    v = x.var(dim=axis, keepdim=True, unbiased=False)
    return (x - m) / torch.sqrt(v + eps)
def _scatter_add(tgt, idx, src, axis=0):
    return tgt.clone().index_add_(axis, idx, src)
def _segment_sum(src, seg, n):
    out = torch.zeros((n,) + src.shape[1:], dtype=src.dtype)
    return out.index_add_(0, seg, src)
def _pad(x, pw):
    flat = tuple(v for pair in reversed(pw) for v in pair)
    return torch.nn.functional.pad(x, flat)

kernel_name = 'standalone__sequential_behavior_din__recsys'

def setup_inputs():

    _w = (lambda a: (lambda t: t.to(torch.bfloat16) if t.is_floating_point() else t)(torch.as_tensor(a)))
    B, L, D = 16384, 200, 16
    H = D
    return {
        "target": _w((lambda *s: torch.randn(*s, dtype=torch.bfloat16) * 1.6)(B, D)),
        "hist": _w((lambda *s: torch.randn(*s, dtype=torch.bfloat16) * 1.6)(B, L, D)),
        "mask": _w((lambda lo, hi, *s: torch.randint(lo, hi, s))(0, 2, B, L).to(float)),
        "w1": _w((lambda *s: torch.randn(*s, dtype=torch.bfloat16) * 1.6)(4 * D, H) * (4 * D) ** -0.5),
        "b1": _w((lambda *s: torch.randn(*s, dtype=torch.bfloat16) * 1.6)(H) * 0.1),
        "w2": _w((lambda *s: torch.randn(*s, dtype=torch.bfloat16) * 0.05)(H, 1) * H ** -0.5),
        "b2": _w((lambda *s: torch.randn(*s, dtype=torch.bfloat16) * 0.05)(1) * 0.1),
    }

def reference(target, hist, mask, w1, b1, w2, b2):
    L = hist.shape[1]
    tgt = (lambda x, n, axis: torch.repeat_interleave(x, n, dim=axis))(target[:, None, :], L, axis=1)
    feat = torch.concatenate([hist, tgt, hist - tgt, hist * tgt], axis=-1)
    h = _sigmoid(feat @ w1 + b1)
    scores = (h @ w2 + b2)[..., 0] * mask
    return torch.einsum('bl,bld->bd', scores, hist)
```

```python
import argparse

NAME = "standalone__sequential_behavior_din__recsys"

HEADER = """; Kernarg layout for this problem (80 bytes, ptrs only, base s[0:1]):
"""


class Gen:
    def __init__(self, a):
        self.a = a
        self.L = []
        self.vmq = []

    def e(self, s):
        self.L.append("    " + s)

    def c(self, s):
        self.L.append("    ; " + s)

    def label(self, s):
        self.L.append(s + ":")

    def vm(self, tag, s):
        self.e(s)
        self.vmq.append(tag)

    def waitvm(self, *tags, extra=""):
        idx = max(self.vmq.index(t) for t in tags)
        n = len(self.vmq) - 1 - idx
        self.e(f"s_waitcnt vmcnt({n}){extra}")
        self.vmq = self.vmq[idx + 1:]


def vr(base, n):
    return f"v[{base}:{base + n - 1}]"


def build(a):
    g = Gen(a)
    e, c = g.e, g.c
    NB = a.nb
    WPG = a.wpg
    NWG = 16384 // (NB * WPG)
    hpol = a.hpol
    mpol = a.mpol
    LDSW = NB * 1024 + (NB + 1) * 64 + 0
    LDSW = (LDSW + 255) // 256 * 256
    LDS_C = NB * 1024
    lds_total = LDSW * WPG

    vH, vH2, vM, vRes = 0, 1, 2, 3
    vLA, vLC, vOut, vTmp = 4, 5, 6, 7
    A3, C3, A = 8, 12, 16
    CT = 20
    D0, D1 = 36, 52
    ACC = 68
    RH = 76
    RM = 104
    NV = 112
    sH, sM, sO = 24, 28, 32
    sT, sW, sB1, sW2, sB2 = 36, 40, 44, 48, 52
    sScale = 56
    sLane = 58
    sCnt = 60
    sWave = 61
    sTmp = 62
    sDbg = 64

    def hload(t, tag):
        if t < 4:
            g.vm(tag, f"buffer_load_dwordx4 {vr(RH + 4 * t, 4)}, v{vH}, s[{sH}:{sH + 3}], 0 offen offset:{1024 * t} {hpol}")
        else:
            g.vm(tag, f"buffer_load_dwordx4 {vr(RH + 4 * t, 4)}, v{vH2}, s[{sH}:{sH + 3}], 0 offen offset:{1024 * (t - 4)} {hpol}")

    def mload(t, tag):
        g.vm(tag, f"buffer_load_short_d16_hi v{RM + t}, v{vM}, s[{sM}:{sM + 3}], 0 offen offset:{64 * t} {mpol}")

    e(f"s_cmp_ge_u32 s2, {NWG}")
    e("s_cbranch_scc1 L_end")
    e("s_load_dwordx16 s[4:19], s[0:1], 0")
    if a.dbg:
        e(f"s_load_dwordx2 s[{sDbg}:{sDbg+1}], s[0:1], 64")
        e("s_memtime s[70:71]")
        e("s_memrealtime s[72:73]")
    if WPG > 1:
        e("v_lshrrev_b32 v7, 6, v0")
        e("v_and_b32 v0, 63, v0")
        e(f"v_readfirstlane_b32 s{sWave}, v7")
    else:
        e(f"s_mov_b32 s{sWave}, 0")
    vN, vHalf, vJ = 108 + 0, 109, 110
    vN, vHalf, vJ = CT + 8, CT + 9, CT + 10
    e(f"v_mov_b32 v{vJ}, v0")
    e(f"v_and_b32 v{vN}, 31, v0")
    e(f"v_lshrrev_b32 v{vHalf}, 5, v0")
    e(f"v_lshlrev_b32 v{vM}, 1, v{vN}")
    e(f"v_lshlrev_b32 v{vH2}, 4, v{vHalf}")
    e(f"v_lshl_add_u32 v{vH}, v{vN}, 5, v{vH2}")
    t0, t1, t2, t3 = CT + 11, CT + 12, CT + 13, CT + 14
    e(f"v_and_b32 v{t0}, 3, v{vN}")
    e(f"v_bfe_u32 v{t1}, v{vN}, 2, 1")
    e(f"v_bfe_u32 v{t2}, v{vN}, 3, 1")
    e(f"v_lshl_add_u32 v{t0}, v{t1}, 3, v{t0}")
    e(f"v_lshl_add_u32 v{t0}, v{t2}, 2, v{t0}")
    e(f"v_lshl_add_u32 v{t0}, v{t0}, 5, v{vH2}")
    e(f"v_bfe_u32 v{t1}, v{vN}, 4, 1")
    e(f"v_mul_u32_u24 v{t2}, 0x600, v{t1}")
    e(f"v_add_u32 v{t2}, v{t2}, v{t0}")
    e(f"v_lshl_add_u32 v{t0}, v{t1}, 9, v{t0}")
    e(f"v_and_b32 v{t1}, {NB - 1}, v{vN}")
    e(f"v_lshl_add_u32 v{t1}, v{t1}, 5, v{vH2}")
    e(f"v_lshlrev_b32 v{t3}, 3, v{vHalf}")
    t4 = CT + 15
    e(f"v_lshrrev_b32 v{t4}, 2, v{vJ}")
    e(f"v_xor_b32 v{t4}, v{t4}, v{vJ}")
    e(f"v_and_b32 v{t4}, 4, v{t4}")
    e(f"v_lshl_add_u32 v{t4}, v{t4}, 8, v{t3}")
    e(f"v_add_u32 v{vH2}, 4096, v{vH}")
    for t in range(7):
        e(f"v_mov_b32 v{RM + t}, 0")
    e(f"v_mov_b32 v{C3}, 0")
    e(f"s_mul_i32 s3, s2, {WPG}")
    e(f"s_add_u32 s3, s3, s{sWave}")
    e(f"s_mul_i32 s20, s3, {NB * 6400}")
    e(f"s_mul_i32 s21, s3, {NB * 400}")
    e(f"s_mul_i32 s22, s3, {NB * 32}")
    e("s_waitcnt lgkmcnt(0)")
    def srd(d, lo, off, nrec):
        if off is None:
            e(f"s_mov_b32 s{d}, s{lo}")
            e(f"s_mov_b32 s{d + 1}, s{lo + 1}")
        else:
            e(f"s_add_u32 s{d}, s{lo}, s{off}")
            e(f"s_addc_u32 s{d + 1}, s{lo + 1}, 0")
        e(f"s_mov_b32 s{d + 2}, {nrec}")
        e(f"s_mov_b32 s{d + 3}, 0x20000")
    WAD, WBC, T, B1P = D1, D1 + 4, D1 + 8, D1 + 12
    srd(sW, 10, None, 2048)
    g.vm("wad", f"buffer_load_dwordx4 {vr(WAD, 4)}, v{t2}, s[{sW}:{sW + 3}], 0 offen")
    g.vm("wbc", f"buffer_load_dwordx4 {vr(WBC, 4)}, v{t0}, s[{sW}:{sW + 3}], 0 offen offset:512")
    srd(sT, 4, 22, NB * 32)
    g.vm("t", f"buffer_load_dwordx4 {vr(T, 4)}, v{t1}, s[{sT}:{sT + 3}], 0 offen")
    srd(sB1, 12, None, 32)
    g.vm("b1a", f"buffer_load_dwordx2 {vr(B1P, 2)}, v{t3}, s[{sB1}:{sB1 + 3}], 0 offen")
    g.vm("b1b", f"buffer_load_dwordx2 {vr(B1P + 2, 2)}, v{t3}, s[{sB1}:{sB1 + 3}], 0 offen offset:16")
    srd(sW2, 14, None, 32)
    g.vm("w2a", f"buffer_load_dwordx2 {vr(A3, 2)}, v{t4}, s[{sW2}:{sW2 + 3}], 0 offen")
    g.vm("w2b", f"buffer_load_dwordx2 {vr(A3 + 2, 2)}, v{t4}, s[{sW2}:{sW2 + 3}], 0 offen offset:16")
    srd(sB2, 16, None, 2)
    g.vm("b2", f"buffer_load_short_d16_hi v{C3}, off, s[{sB2}:{sB2 + 3}], 0")
    srd(sH, 6, 20, 6400)
    srd(sM, 8, 21, 400)
    hload(0, "H0")
    hload(1, "H1")
    for t in range(2, 7):
        mload(t - 2, f"M{t - 2}")
        hload(t, f"H{t}")
    mload(5, "M5")
    mload(6, "M6")
    srd(sO, 18, 22, NB * 32)
    def adv(s, stride):
        e(f"s_add_u32 s{s}, s{s}, {stride}")
        e(f"s_addc_u32 s{s + 1}, s{s + 1}, 0")
    adv(sH, 6400)
    adv(sM, 400)
    e(f"s_mov_b32 s{sScale}, 0xbfb8aa3b")
    e(f"s_mul_i32 s{sTmp}, s{sWave}, {LDSW}")
    e(f"v_lshl_add_u32 v{vLA}, v{vJ}, 4, s{sTmp}")
    e(f"v_lshl_add_u32 v{vLC}, v{vHalf}, 5, s{sTmp}")
    e(f"v_and_b32 v{vOut}, 8, v{vJ}")
    e(f"v_lshl_add_u32 v{vOut}, v{vHalf}, 2, v{vOut}")
    e(f"v_bfe_u32 v{t0}, v{vJ}, 2, 1")
    e(f"v_lshl_add_u32 v{vOut}, v{t0}, 1, v{vOut}")
    e(f"v_bfe_u32 v{t0}, v{vJ}, 4, 1")
    e(f"v_add_u32 v{vOut}, v{vOut}, v{t0}")
    e(f"v_and_b32 v{t0}, 3, v{vJ}")
    e(f"v_lshlrev_b32 v{vOut}, 1, v{vOut}")
    e(f"v_lshl_add_u32 v{vOut}, v{t0}, 5, v{vOut}")
    I16 = A
    e(f"v_lshlrev_b32 v{t0}, 3, v{vHalf}")
    e(f"v_sub_u32 v{t0}, v{vN}, v{t0}")
    e(f"v_and_b32 v{t1}, 1, v{t0}")
    e(f"v_lshlrev_b32 v{t1}, 4, v{t1}")
    e(f"v_mov_b32 v{t2}, 0x3f80")
    e(f"v_lshlrev_b32 v{t1}, v{t1}, v{t2}")
    e(f"v_lshrrev_b32 v{t0}, 1, v{t0}")
    for q in range(4):
        e(f"v_cmp_eq_u32 s[{66 + 2 * q}:{67 + 2 * q}], {q}, v{t0}") if False else None
    for q in range(4):
        e(f"v_cmp_eq_u32 vcc, {q}, v{t0}")
        e("s_nop 1")
        e(f"v_cndmask_b32 v{I16 + q}, 0, v{t1}, vcc")
    e(f"v_and_b32 v{t0}, {NB - 1}, v{vN}")
    e(f"v_lshl_add_u32 v{vTmp}, v{t0}, 6, v{vLC}")
    X, Y = D0, CT
    g.waitvm("wad", "wbc")
    e(f"v_mfma_f32_32x32x16_bf16 {vr(X, 16)}, {vr(WAD, 4)}, {vr(I16, 4)}, 0")
    e(f"v_mfma_f32_32x32x16_bf16 {vr(Y, 16)}, {vr(WBC, 4)}, {vr(I16, 4)}, 0")
    g.waitvm("t", "b1a", "b1b")
    TF = ACC
    for q in range(4):
        e(f"v_lshlrev_b32 v{TF + 2 * q}, 16, v{T + q}")
        e(f"v_and_b32 v{TF + 2 * q + 1}, 0xffff0000, v{T + q}")
    for q in range(4):
        e(f"v_lshlrev_b32 v{D1 + 2 * q}, 16, v{B1P + q}")
        e(f"v_and_b32 v{D1 + 2 * q + 1}, 0xffff0000, v{B1P + q}")
    for q in range(4):
        e(f"v_pk_add_f32 {vr(X + 2 * q, 2)}, {vr(X + 2 * q, 2)}, {vr(Y + 8 + 2 * q, 2)}")
    for q in range(4):
        e(f"v_cvt_pk_bf16_f32 v{A + q}, v{Y + 2 * q}, v{Y + 2 * q + 1}")
    for q in range(4):
        e(f"v_cvt_pk_bf16_f32 v{B1P + q}, -v{Y + 8 + 2 * q}, -v{Y + 9 + 2 * q}")
    for q in range(8):
        e(f"v_pk_mul_f32 {vr(X + 2 * q, 2)}, {vr(X + 2 * q, 2)}, s[{sScale}:{sScale + 1}] op_sel_hi:[1,0]")
    e(f"v_mfma_f32_32x32x16_bf16 {vr(Y, 16)}, {vr(A, 4)}, {vr(T, 4)}, {vr(D1, 16)}")
    e(f"v_mfma_f32_32x32x16_bf16 {vr(Y, 16)}, {vr(B1P, 4)}, {vr(T, 4)}, {vr(Y, 16)}")
    e(f"s_mov_b32 s{sLane}, 0x10000")
    e(f"s_mov_b32 s{sLane + 1}, 0x1000000")
    for r in range(8):
        e(f"v_cndmask_b32 v{X + r}, v{X + r}, 1.0, s[{sLane}:{sLane + 1}]")
        e(f"s_lshl_b64 s[{sLane}:{sLane + 1}], s[{sLane}:{sLane + 1}], 1")
    for q in range(4):
        e(f"v_pk_mul_f32 {vr(Y + 2 * q, 2)}, {vr(Y + 2 * q, 2)}, s[{sScale}:{sScale + 1}] op_sel_hi:[1,0]")
    e(f"ds_write_b128 v{vTmp}, {vr(Y, 4)} offset:{LDS_C}")
    e(f"ds_write_b128 v{vTmp}, {vr(Y + 4, 4)} offset:{LDS_C + 16}")
    MT = D1
    for b in list(range(1, NB)) + [0]:
        for r in range(8):
            e(f"v_mul_f32_dpp v{MT + r}, v{TF + r}, v{X + 8 + r} row_newbcast:{b} row_mask:0xf bank_mask:0xf")
        for q in range(4):
            e(f"v_pk_add_f32 {vr(MT + 2 * q, 2)}, {vr(MT + 2 * q, 2)}, {vr(X + 2 * q, 2)}")
        dst = A if b == 0 else MT + 8 + 4 * (b & 1)
        for q in range(4):
            e(f"v_cvt_pk_bf16_f32 v{dst + q}, v{MT + 2 * q}, v{MT + 2 * q + 1}")
        if b:
            e(f"ds_write_b128 v{vLA}, {vr(dst, 4)} offset:{1024 * b}")
    e("s_waitcnt lgkmcnt(0)")
    e(f"ds_read_b128 {vr(CT, 4)}, v{vLC} offset:{LDS_C}")
    e(f"ds_read_b128 {vr(CT + 4, 4)}, v{vLC} offset:{LDS_C + 16}")
    for r in range(8):
        e(f"v_mov_b32 v{CT + 8 + r}, 0")
    g.waitvm("w2a", "w2b", "b2")
    for r in range(1, 4):
        e(f"v_mov_b32 v{C3 + r}, v{C3}")
    e(f"s_mov_b32 s{sLane}, 0x11111111")
    e(f"s_mov_b32 s{sLane + 1}, 0x11111111")
    e(f"s_mov_b32 s{sCnt}, 0")
    if NB == 1:
        e(f"s_mov_b32 s{sH + 2}, 0")
        e(f"s_mov_b32 s{sM + 2}, 0")

    def mfma1(t, Dst):
        e(f"v_mfma_f32_32x32x16_bf16 {vr(Dst, 16)}, {vr(A, 4)}, {vr(RH + 4 * t, 4)}, {vr(CT, 16)}")

    g.waitvm("H0", extra=" lgkmcnt(0)")
    mfma1(0, D0)
    hload(0, "H0")
    e("s_nop 10")
    steady = list(g.vmq)

    def step5(t, Yb):
        e(f"v_mul_f32 v{Yb + 4}, v{Yb + 4}, v{RM + t}")
        for q in range(4):
            if t == 0:
                e(f"v_pk_mul_f32 {vr(ACC + 2 * q, 2)}, {vr(Yb + 8 + 2 * q, 2)}, {vr(Yb + 4, 2)} op_sel_hi:[1,0]")
            else:
                e(f"v_pk_fma_f32 {vr(ACC + 2 * q, 2)}, {vr(Yb + 8 + 2 * q, 2)}, {vr(Yb + 4, 2)}, {vr(ACC + 2 * q, 2)} op_sel_hi:[1,0,1]")

    g.L.append(".p2align 6") if a.align else None
    g.label("L_loop")
    for t in range(7):
        Xb = D0 if t % 2 == 0 else D1
        Yb = D1 if t % 2 == 0 else D0
        c(f"---- tile {t}")
        for r in range(8):
            e(f"v_exp_f32 v{Xb + r}, v{Xb + r}")
        need = []
        if t > 0:
            need.append(f"M{t - 1}")
        if t < 6:
            need.append(f"H{t + 1}")
        g.waitvm(*need)
        if t > 0:
            step5(t - 1, Yb)
        if t < 6:
            mfma1(t + 1, Yb)
        for q in range(4):
            e(f"v_pk_add_f32 {vr(Xb + 2 * q, 2)}, {vr(Xb + 2 * q, 2)}, 1.0 op_sel_hi:[1,0]")
        for r in range(8):
            e(f"v_rcp_f32 v{Xb + r}, v{Xb + r}")
        if t == 5:
            e(f"v_add_u32 v{vLA}, 1024, v{vLA}")
            e(f"v_add_u32 v{vLC}, 64, v{vLC}")
            e(f"ds_read_b128 {vr(A, 4)}, v{vLA}")
            e(f"ds_read_b128 {vr(CT, 4)}, v{vLC} offset:{LDS_C}")
            e(f"ds_read_b128 {vr(CT + 4, 4)}, v{vLC} offset:{LDS_C + 16}")
        for q in range(4):
            e(f"v_cvt_pk_bf16_f32 v{Xb + q}, v{Xb + 2 * q}, v{Xb + 2 * q + 1}")
        n = 0
        if t > 0:
            mload(t - 1, f"M{t - 1}")
            n += 1
        if t < 6:
            hload(t + 1, f"H{t + 1}")
            n += 1
        if n < 2:
            e("s_nop 0")
        e(f"v_mfma_f32_16x16x32_bf16 {vr(Xb + 4, 4)}, {vr(A3, 4)}, {vr(Xb, 4)}, {vr(C3, 4)}")
    c("---- end of row")
    e(f"s_add_u32 s{sCnt}, s{sCnt}, 1")
    adv(sH, 6400)
    e(f"s_cmp_lt_u32 s{sCnt}, {NB - 1}")
    e(f"s_cselect_b32 s{sH + 2}, 6400, 0")
    e("s_nop 2")
    g.waitvm("M6")
    step5(6, D0)
    mload(6, "M6")
    adv(sM, 400)
    e(f"s_cmp_lt_u32 s{sCnt}, {NB - 1}")
    e(f"s_cselect_b32 s{sM + 2}, 400, 0")
    g.waitvm("H0", extra=" lgkmcnt(0)")
    mfma1(0, D0)
    hload(0, "H0")
    dpp = "row_mask:0xf bank_mask:"
    for r in range(4):
        e(f"v_add_f32_dpp v{ACC + r}, v{ACC + r}, v{ACC + r} row_ror:8 {dpp}0xf")
    for r in range(4):
        e(f"v_add_f32_dpp v{ACC + r}, v{ACC + 4 + r}, v{ACC + 4 + r} row_ror:8 {dpp}0xc")
    for r in range(2):
        e(f"v_add_f32_dpp v{ACC + r}, v{ACC + r}, v{ACC + r} row_half_mirror {dpp}0xf")
    for r in range(2):
        e(f"v_add_f32_dpp v{ACC + r}, v{ACC + 2 + r}, v{ACC + 2 + r} row_half_mirror {dpp}0xa")
    e("s_nop 1")
    e(f"v_permlane16_swap_b32 v{ACC}, v{ACC + 1}")
    e("s_nop 0")
    e(f"v_add_f32 v{ACC}, v{ACC}, v{ACC + 1}")
    e("s_nop 1")
    e(f"v_add_f32_dpp v{ACC}, v{ACC}, v{ACC} quad_perm:[1,0,3,2] {dpp}0xf")
    e("s_nop 1")
    e(f"v_add_f32_dpp v{ACC}, v{ACC}, v{ACC} quad_perm:[2,3,0,1] {dpp}0xf")
    if NB <= 4:
        e(f"v_cndmask_b32 v{vRes}, v{vRes}, v{ACC}, s[{sLane}:{sLane + 1}]")
        e(f"s_lshl_b64 s[{sLane}:{sLane + 1}], s[{sLane}:{sLane + 1}], 1")
        e(f"s_cmp_lt_u32 s{sCnt}, {NB}")
        e("s_cbranch_scc1 L_loop")
        assert g.vmq == steady, (g.vmq, steady)
        e(f"v_cvt_pk_bf16_f32 v{vRes}, v{vRes}, v{vRes}")
        e(f"buffer_store_short v{vRes}, v{vOut}, s[{sO}:{sO + 3}], 0 offen")
    else:
        raise NotImplementedError
    if a.dbg:
        e("s_memtime s[74:75]")
        e("s_memrealtime s[76:77]")
        e("s_waitcnt lgkmcnt(0)")
        e("s_sub_u32 s74, s74, s70")
        e("s_sub_u32 s76, s76, s72")
        e("s_mov_b32 s66, 256")
        e("s_mov_b32 s67, 0x20000")
        e("v_mov_b32 v8, s74")
        e("v_mov_b32 v9, s76")
        e("v_mov_b32 v10, s72")
        e("v_mov_b32 v11, s3")
        e("s_and_b32 s78, s3, 1023")
        e("s_cmp_lg_u32 s78, 0")
        e("s_cbranch_scc1 L_end")
        e("s_lshr_b32 s78, s3, 10")
        e("s_lshl_b32 s78, s78, 4")
        e("v_mov_b32 v12, s78")
        e("buffer_store_dwordx4 v[8:11], v12, s[64:67], 0 offen")
    g.label("L_end")
    e("s_endpgm")

    out = HEADER
    out += f"; @launch grid=({NWG},1,1) block=({64 * WPG},1,1) lds={lds_total}\n"
    out += f""".amdgcn_target "amdgcn-amd-amdhsa--gfx950"
.text
.globl {NAME}_kernel
.p2align 8
.type {NAME}_kernel,@function
{NAME}_kernel:
"""
    out += "\n".join(g.L) + "\n"
    out += f""".section .rodata,"a"
.p2align 6
.amdhsa_kernel {NAME}_kernel
  .amdhsa_next_free_vgpr {a.nvgpr or NV}
  .amdhsa_next_free_sgpr 80
  .amdhsa_accum_offset {min(256, a.nvgpr or NV)}
  .amdhsa_group_segment_fixed_size 0
  .amdhsa_kernarg_size 80
  .amdhsa_user_sgpr_count 2
  .amdhsa_user_sgpr_kernarg_segment_ptr 1
  .amdhsa_system_sgpr_workgroup_id_x 1
.end_amdhsa_kernel
"""
    return out


if __name__ == "__main__":
    p = argparse.ArgumentParser()
    p.add_argument("-o", default=f"cdna_kernels/{NAME}.s")
    p.add_argument("--nb", type=int, default=4)
    p.add_argument("--wpg", type=int, default=4)
    p.add_argument("--hpol", default="")
    p.add_argument("--mpol", default="")
    p.add_argument("--nvgpr", type=int, default=0)
    p.add_argument("--dbg", type=int, default=0)
    p.add_argument("--align", type=int, default=0)
    a = p.parse_args()
    open(a.o, "w").write(build(a))
```

```python
import argparse

NAME = "standalone__sequential_behavior_din__recsys"

HEADER = """; Kernarg layout for this problem (80 bytes, ptrs only, base s[0:1]):
"""


class Gen:
    def __init__(self, a):
        self.a = a
        self.L = []
        self.vmq = []

    def e(self, s):
        self.L.append("    " + s)

    def c(self, s):
        self.L.append("    ; " + s)

    def label(self, s):
        self.L.append(s + ":")

    def vm(self, tag, s):
        self.e(s)
        self.vmq.append(tag)

    def waitvm(self, *tags, extra=""):
        idx = max(self.vmq.index(t) for t in tags)
        n = len(self.vmq) - 1 - idx
        self.e(f"s_waitcnt vmcnt({n}){extra}")
        self.vmq = self.vmq[idx + 1:]


def vr(base, n):
    return f"v[{base}:{base + n - 1}]"


def build(a):
    g = Gen(a)
    e, c = g.e, g.c
    NB = a.nb
    WPG = a.wpg
    NWG = 16384 // (NB * WPG)
    hpol = a.hpol
    mpol = a.mpol
    LDSW = NB * 1024 + (NB + 1) * 64 + 0
    LDSW = (LDSW + 255) // 256 * 256
    LDS_C = NB * 1024
    lds_total = LDSW * WPG

    vH, vH2, vM, vRes = 0, 1, 2, 3
    vLA, vLC, vOut, vTmp = 4, 5, 6, 7
    A3, C3, A = 8, 12, 16
    CT = 20
    D0, D1 = 36, 52
    ACC = 68
    RH = 76
    RM = 104
    NV = 112
    sH, sM, sO = 24, 28, 32
    sT, sW, sB1, sW2, sB2 = 36, 40, 44, 48, 52
    sScale = 56
    sLane = 58
    sCnt = 60
    sWave = 61
    sTmp = 62
    sDbg = 64

    def hload(t, tag):
        if t < 4:
            g.vm(tag, f"buffer_load_dwordx4 {vr(RH + 4 * t, 4)}, v{vH}, s[{sH}:{sH + 3}], 0 offen offset:{1024 * t} {hpol}")
        else:
            g.vm(tag, f"buffer_load_dwordx4 {vr(RH + 4 * t, 4)}, v{vH2}, s[{sH}:{sH + 3}], 0 offen offset:{1024 * (t - 4)} {hpol}")

    def mload(t, tag):
        g.vm(tag, f"buffer_load_short_d16_hi v{RM + t}, v{vM}, s[{sM}:{sM + 3}], 0 offen offset:{64 * t} {mpol}")

    e(f"s_cmp_ge_u32 s2, {NWG}")
    e("s_cbranch_scc1 L_end")
    e("s_load_dwordx16 s[4:19], s[0:1], 0")
    if a.dbg:
        e(f"s_load_dwordx2 s[{sDbg}:{sDbg+1}], s[0:1], 64")
        e("s_memtime s[70:71]")
        e("s_memrealtime s[72:73]")
    if WPG > 1:
        e("v_lshrrev_b32 v7, 6, v0")
        e("v_and_b32 v0, 63, v0")
        e(f"v_readfirstlane_b32 s{sWave}, v7")
    else:
        e(f"s_mov_b32 s{sWave}, 0")
    vN, vHalf, vJ = 108 + 0, 109, 110
    vN, vHalf, vJ = CT + 8, CT + 9, CT + 10
    e(f"v_mov_b32 v{vJ}, v0")
    e(f"v_and_b32 v{vN}, 31, v0")
    e(f"v_lshrrev_b32 v{vHalf}, 5, v0")
    e(f"v_lshlrev_b32 v{vM}, 1, v{vN}")
    e(f"v_lshlrev_b32 v{vH2}, 4, v{vHalf}")
    e(f"v_lshl_add_u32 v{vH}, v{vN}, 5, v{vH2}")
    t0, t1, t2, t3 = CT + 11, CT + 12, CT + 13, CT + 14
    e(f"v_and_b32 v{t0}, 3, v{vN}")
    e(f"v_bfe_u32 v{t1}, v{vN}, 2, 1")
    e(f"v_bfe_u32 v{t2}, v{vN}, 3, 1")
    e(f"v_lshl_add_u32 v{t0}, v{t1}, 3, v{t0}")
    e(f"v_lshl_add_u32 v{t0}, v{t2}, 2, v{t0}")
    e(f"v_lshl_add_u32 v{t0}, v{t0}, 5, v{vH2}")
    e(f"v_bfe_u32 v{t1}, v{vN}, 4, 1")
    e(f"v_mul_u32_u24 v{t2}, 0x600, v{t1}")
    e(f"v_add_u32 v{t2}, v{t2}, v{t0}")
    e(f"v_lshl_add_u32 v{t0}, v{t1}, 9, v{t0}")
    e(f"v_and_b32 v{t1}, {NB - 1}, v{vN}")
    e(f"v_lshl_add_u32 v{t1}, v{t1}, 5, v{vH2}")
    e(f"v_lshlrev_b32 v{t3}, 3, v{vHalf}")
    t4 = CT + 15
    e(f"v_lshrrev_b32 v{t4}, 2, v{vJ}")
    e(f"v_xor_b32 v{t4}, v{t4}, v{vJ}")
    e(f"v_and_b32 v{t4}, 4, v{t4}")
    e(f"v_lshl_add_u32 v{t4}, v{t4}, 8, v{t3}")
    e(f"v_add_u32 v{vH2}, 4096, v{vH}")
    for t in range(7):
        e(f"v_mov_b32 v{RM + t}, 0")
    e(f"v_mov_b32 v{C3}, 0")
    e(f"s_mul_i32 s3, s2, {WPG}")
    e(f"s_add_u32 s3, s3, s{sWave}")
    e(f"s_mul_i32 s20, s3, {NB * 6400}")
    e(f"s_mul_i32 s21, s3, {NB * 400}")
    e(f"s_mul_i32 s22, s3, {NB * 32}")
    e("s_waitcnt lgkmcnt(0)")
    def srd(d, lo, off, nrec):
        if off is None:
            e(f"s_mov_b32 s{d}, s{lo}")
            e(f"s_mov_b32 s{d + 1}, s{lo + 1}")
        else:
            e(f"s_add_u32 s{d}, s{lo}, s{off}")
            e(f"s_addc_u32 s{d + 1}, s{lo + 1}, 0")
        e(f"s_mov_b32 s{d + 2}, {nrec}")
        e(f"s_mov_b32 s{d + 3}, 0x20000")
    WAD, WBC, T, B1P = D1, D1 + 4, D1 + 8, D1 + 12
    srd(sW, 10, None, 2048)
    g.vm("wad", f"buffer_load_dwordx4 {vr(WAD, 4)}, v{t2}, s[{sW}:{sW + 3}], 0 offen")
    g.vm("wbc", f"buffer_load_dwordx4 {vr(WBC, 4)}, v{t0}, s[{sW}:{sW + 3}], 0 offen offset:512")
    srd(sT, 4, 22, NB * 32)
    g.vm("t", f"buffer_load_dwordx4 {vr(T, 4)}, v{t1}, s[{sT}:{sT + 3}], 0 offen")
    srd(sB1, 12, None, 32)
    g.vm("b1a", f"buffer_load_dwordx2 {vr(B1P, 2)}, v{t3}, s[{sB1}:{sB1 + 3}], 0 offen")
    g.vm("b1b", f"buffer_load_dwordx2 {vr(B1P + 2, 2)}, v{t3}, s[{sB1}:{sB1 + 3}], 0 offen offset:16")
    srd(sW2, 14, None, 32)
    g.vm("w2a", f"buffer_load_dwordx2 {vr(A3, 2)}, v{t4}, s[{sW2}:{sW2 + 3}], 0 offen")
    g.vm("w2b", f"buffer_load_dwordx2 {vr(A3 + 2, 2)}, v{t4}, s[{sW2}:{sW2 + 3}], 0 offen offset:16")
    srd(sB2, 16, None, 2)
    g.vm("b2", f"buffer_load_short_d16_hi v{C3}, off, s[{sB2}:{sB2 + 3}], 0")
    srd(sH, 6, 20, 6400)
    srd(sM, 8, 21, 400)
    hload(0, "H0")
    hload(1, "H1")
    for t in range(2, 7):
        mload(t - 2, f"M{t - 2}")
        hload(t, f"H{t}")
    mload(5, "M5")
    mload(6, "M6")
    srd(sO, 18, 22, NB * 32)
    def adv(s, stride):
        e(f"s_add_u32 s{s}, s{s}, {stride}")
        e(f"s_addc_u32 s{s + 1}, s{s + 1}, 0")
    adv(sH, 6400)
    adv(sM, 400)
    e(f"s_mov_b32 s{sScale}, 0xbfb8aa3b")
    e(f"s_mul_i32 s{sTmp}, s{sWave}, {LDSW}")
    e(f"v_lshl_add_u32 v{vLA}, v{vJ}, 4, s{sTmp}")
    e(f"v_lshl_add_u32 v{vLC}, v{vHalf}, 5, s{sTmp}")
    e(f"v_and_b32 v{vOut}, 8, v{vJ}")
    e(f"v_lshl_add_u32 v{vOut}, v{vHalf}, 2, v{vOut}")
    e(f"v_bfe_u32 v{t0}, v{vJ}, 2, 1")
    e(f"v_lshl_add_u32 v{vOut}, v{t0}, 1, v{vOut}")
    e(f"v_bfe_u32 v{t0}, v{vJ}, 4, 1")
    e(f"v_add_u32 v{vOut}, v{vOut}, v{t0}")
    e(f"v_and_b32 v{t0}, 3, v{vJ}")
    e(f"v_lshlrev_b32 v{vOut}, 1, v{vOut}")
    e(f"v_lshl_add_u32 v{vOut}, v{t0}, 5, v{vOut}")
    I16 = A
    e(f"v_lshlrev_b32 v{t0}, 3, v{vHalf}")
    e(f"v_sub_u32 v{t0}, v{vN}, v{t0}")
    e(f"v_and_b32 v{t1}, 1, v{t0}")
    e(f"v_lshlrev_b32 v{t1}, 4, v{t1}")
    e(f"v_mov_b32 v{t2}, 0x3f80")
    e(f"v_lshlrev_b32 v{t1}, v{t1}, v{t2}")
    e(f"v_lshrrev_b32 v{t0}, 1, v{t0}")
    for q in range(4):
        e(f"v_cmp_eq_u32 s[{66 + 2 * q}:{67 + 2 * q}], {q}, v{t0}") if False else None
    for q in range(4):
        e(f"v_cmp_eq_u32 vcc, {q}, v{t0}")
        e("s_nop 1")
        e(f"v_cndmask_b32 v{I16 + q}, 0, v{t1}, vcc")
    e(f"v_and_b32 v{t0}, {NB - 1}, v{vN}")
    e(f"v_lshl_add_u32 v{vTmp}, v{t0}, 6, v{vLC}")
    X, Y = D0, CT
    g.waitvm("wad", "wbc")
    e(f"v_mfma_f32_32x32x16_bf16 {vr(X, 16)}, {vr(WAD, 4)}, {vr(I16, 4)}, 0")
    e(f"v_mfma_f32_32x32x16_bf16 {vr(Y, 16)}, {vr(WBC, 4)}, {vr(I16, 4)}, 0")
    g.waitvm("t", "b1a", "b1b")
    TF = ACC
    for q in range(4):
        e(f"v_lshlrev_b32 v{TF + 2 * q}, 16, v{T + q}")
        e(f"v_and_b32 v{TF + 2 * q + 1}, 0xffff0000, v{T + q}")
    for q in range(4):
        e(f"v_lshlrev_b32 v{D1 + 2 * q}, 16, v{B1P + q}")
        e(f"v_and_b32 v{D1 + 2 * q + 1}, 0xffff0000, v{B1P + q}")
    for q in range(4):
        e(f"v_pk_add_f32 {vr(X + 2 * q, 2)}, {vr(X + 2 * q, 2)}, {vr(Y + 8 + 2 * q, 2)}")
    for q in range(4):
        e(f"v_cvt_pk_bf16_f32 v{A + q}, v{Y + 2 * q}, v{Y + 2 * q + 1}")
    for q in range(4):
        e(f"v_cvt_pk_bf16_f32 v{B1P + q}, -v{Y + 8 + 2 * q}, -v{Y + 9 + 2 * q}")
    for q in range(8):
        e(f"v_pk_mul_f32 {vr(X + 2 * q, 2)}, {vr(X + 2 * q, 2)}, s[{sScale}:{sScale + 1}] op_sel_hi:[1,0]")
    e(f"v_mfma_f32_32x32x16_bf16 {vr(Y, 16)}, {vr(A, 4)}, {vr(T, 4)}, {vr(D1, 16)}")
    e(f"v_mfma_f32_32x32x16_bf16 {vr(Y, 16)}, {vr(B1P, 4)}, {vr(T, 4)}, {vr(Y, 16)}")
    e(f"s_mov_b32 s{sLane}, 0x10000")
    e(f"s_mov_b32 s{sLane + 1}, 0x1000000")
    for r in range(8):
        e(f"v_cndmask_b32 v{X + r}, v{X + r}, 1.0, s[{sLane}:{sLane + 1}]")
        e(f"s_lshl_b64 s[{sLane}:{sLane + 1}], s[{sLane}:{sLane + 1}], 1")
    for q in range(4):
        e(f"v_pk_mul_f32 {vr(Y + 2 * q, 2)}, {vr(Y + 2 * q, 2)}, s[{sScale}:{sScale + 1}] op_sel_hi:[1,0]")
    e(f"ds_write_b128 v{vTmp}, {vr(Y, 4)} offset:{LDS_C}")
    e(f"ds_write_b128 v{vTmp}, {vr(Y + 4, 4)} offset:{LDS_C + 16}")
    MT = D1
    for b in list(range(1, NB)) + [0]:
        for r in range(8):
            e(f"v_mul_f32_dpp v{MT + r}, v{TF + r}, v{X + 8 + r} row_newbcast:{b} row_mask:0xf bank_mask:0xf")
        for q in range(4):
            e(f"v_pk_add_f32 {vr(MT + 2 * q, 2)}, {vr(MT + 2 * q, 2)}, {vr(X + 2 * q, 2)}")
        dst = A if b == 0 else MT + 8 + 4 * (b & 1)
        for q in range(4):
            e(f"v_cvt_pk_bf16_f32 v{dst + q}, v{MT + 2 * q}, v{MT + 2 * q + 1}")
        if b:
            e(f"ds_write_b128 v{vLA}, {vr(dst, 4)} offset:{1024 * b}")
    e("s_waitcnt lgkmcnt(0)")
    e(f"ds_read_b128 {vr(CT, 4)}, v{vLC} offset:{LDS_C}")
    e(f"ds_read_b128 {vr(CT + 4, 4)}, v{vLC} offset:{LDS_C + 16}")
    for r in range(8):
        e(f"v_mov_b32 v{CT + 8 + r}, 0")
    g.waitvm("w2a", "w2b", "b2")
    for r in range(1, 4):
        e(f"v_mov_b32 v{C3 + r}, v{C3}")
    e(f"s_mov_b32 s{sLane}, 0x11111111")
    e(f"s_mov_b32 s{sLane + 1}, 0x11111111")
    e(f"s_mov_b32 s{sCnt}, 0")
    if NB == 1:
        e(f"s_mov_b32 s{sH + 2}, 0")
        e(f"s_mov_b32 s{sM + 2}, 0")

    def mfma1(t, Dst):
        e(f"v_mfma_f32_32x32x16_bf16 {vr(Dst, 16)}, {vr(A, 4)}, {vr(RH + 4 * t, 4)}, {vr(CT, 16)}")

    g.waitvm("H0", extra=" lgkmcnt(0)")
    mfma1(0, D0)
    hload(0, "H0")
    e("s_nop 10")
    steady = list(g.vmq)

    def step5(t, Yb):
        e(f"v_mul_f32 v{Yb + 4}, v{Yb + 4}, v{RM + t}")
        for q in range(4):
            if t == 0:
                e(f"v_pk_mul_f32 {vr(ACC + 2 * q, 2)}, {vr(Yb + 8 + 2 * q, 2)}, {vr(Yb + 4, 2)} op_sel_hi:[1,0]")
            else:
                e(f"v_pk_fma_f32 {vr(ACC + 2 * q, 2)}, {vr(Yb + 8 + 2 * q, 2)}, {vr(Yb + 4, 2)}, {vr(ACC + 2 * q, 2)} op_sel_hi:[1,0,1]")

    g.L.append(".p2align 6") if a.align else None
    g.label("L_loop")
    for t in range(7):
        Xb = D0 if t % 2 == 0 else D1
        Yb = D1 if t % 2 == 0 else D0
        c(f"---- tile {t}")
        for r in range(8):
            e(f"v_exp_f32 v{Xb + r}, v{Xb + r}")
        need = []
        if t > 0:
            need.append(f"M{t - 1}")
        if t < 6:
            need.append(f"H{t + 1}")
        g.waitvm(*need)
        if t > 0:
            step5(t - 1, Yb)
        if t < 6:
            mfma1(t + 1, Yb)
        for q in range(4):
            e(f"v_pk_add_f32 {vr(Xb + 2 * q, 2)}, {vr(Xb + 2 * q, 2)}, 1.0 op_sel_hi:[1,0]")
        for r in range(8):
            e(f"v_rcp_f32 v{Xb + r}, v{Xb + r}")
        if t == 5:
            e(f"v_add_u32 v{vLA}, 1024, v{vLA}")
            e(f"v_add_u32 v{vLC}, 64, v{vLC}")
            e(f"ds_read_b128 {vr(A, 4)}, v{vLA}")
            e(f"ds_read_b128 {vr(CT, 4)}, v{vLC} offset:{LDS_C}")
            e(f"ds_read_b128 {vr(CT + 4, 4)}, v{vLC} offset:{LDS_C + 16}")
        for q in range(4):
            e(f"v_cvt_pk_bf16_f32 v{Xb + q}, v{Xb + 2 * q}, v{Xb + 2 * q + 1}")
        n = 0
        if t > 0:
            mload(t - 1, f"M{t - 1}")
            n += 1
        if t < 6:
            hload(t + 1, f"H{t + 1}")
            n += 1
        if n < 2:
            e("s_nop 0")
        e(f"v_mfma_f32_16x16x32_bf16 {vr(Xb + 4, 4)}, {vr(A3, 4)}, {vr(Xb, 4)}, {vr(C3, 4)}")
    c("---- end of row")
    e(f"s_add_u32 s{sCnt}, s{sCnt}, 1")
    adv(sH, 6400)
    e(f"s_cmp_lt_u32 s{sCnt}, {NB - 1}")
    e(f"s_cselect_b32 s{sH + 2}, 6400, 0")
    e("s_nop 2")
    g.waitvm("M6")
    step5(6, D0)
    mload(6, "M6")
    adv(sM, 400)
    e(f"s_cmp_lt_u32 s{sCnt}, {NB - 1}")
    e(f"s_cselect_b32 s{sM + 2}, 400, 0")
    g.waitvm("H0", extra=" lgkmcnt(0)")
    mfma1(0, D0)
    hload(0, "H0")
    dpp = "row_mask:0xf bank_mask:"
    for r in range(4):
        e(f"v_add_f32_dpp v{ACC + r}, v{ACC + r}, v{ACC + r} row_ror:8 {dpp}0xf")
    for r in range(4):
        e(f"v_add_f32_dpp v{ACC + r}, v{ACC + 4 + r}, v{ACC + 4 + r} row_ror:8 {dpp}0xc")
    for r in range(2):
        e(f"v_add_f32_dpp v{ACC + r}, v{ACC + r}, v{ACC + r} row_half_mirror {dpp}0xf")
    for r in range(2):
        e(f"v_add_f32_dpp v{ACC + r}, v{ACC + 2 + r}, v{ACC + 2 + r} row_half_mirror {dpp}0xa")
    e("s_nop 1")
    e(f"v_permlane16_swap_b32 v{ACC}, v{ACC + 1}")
    e("s_nop 0")
    e(f"v_add_f32 v{ACC}, v{ACC}, v{ACC + 1}")
    e("s_nop 1")
    e(f"v_add_f32_dpp v{ACC}, v{ACC}, v{ACC} quad_perm:[1,0,3,2] {dpp}0xf")
    e("s_nop 1")
    e(f"v_add_f32_dpp v{ACC}, v{ACC}, v{ACC} quad_perm:[2,3,0,1] {dpp}0xf")
    if NB <= 4:
        e(f"v_cndmask_b32 v{vRes}, v{vRes}, v{ACC}, s[{sLane}:{sLane + 1}]")
        e(f"s_lshl_b64 s[{sLane}:{sLane + 1}], s[{sLane}:{sLane + 1}], 1")
        e(f"s_cmp_lt_u32 s{sCnt}, {NB}")
        e("s_cbranch_scc1 L_loop")
        assert g.vmq == steady, (g.vmq, steady)
        e(f"v_cvt_pk_bf16_f32 v{vRes}, v{vRes}, v{vRes}")
        e(f"buffer_store_short v{vRes}, v{vOut}, s[{sO}:{sO + 3}], 0 offen")
    else:
        raise NotImplementedError
    if a.dbg:
        e("s_memtime s[74:75]")
        e("s_memrealtime s[76:77]")
        e("s_waitcnt lgkmcnt(0)")
        e("s_sub_u32 s74, s74, s70")
        e("s_sub_u32 s76, s76, s72")
        e("s_mov_b32 s66, 256")
        e("s_mov_b32 s67, 0x20000")
        e("v_mov_b32 v8, s74")
        e("v_mov_b32 v9, s76")
        e("v_mov_b32 v10, s72")
        e("v_mov_b32 v11, s3")
        if a.dbg >= 2:
            e(f"s_mul_i32 s79, s76, {a.dbg}")
            g.label("L_spin")
            e("s_sleep 4")
            e("s_memrealtime s[68:69]")
            e("s_waitcnt lgkmcnt(0)")
            e("s_sub_u32 s68, s68, s72")
            e("s_cmp_lt_u32 s68, s79")
            e("s_cbranch_scc1 L_spin")
        e("s_and_b32 s78, s3, 1023")
        e("s_cmp_lg_u32 s78, 0")
        e("s_cbranch_scc1 L_end")
        e("s_lshr_b32 s78, s3, 10")
        e("s_lshl_b32 s78, s78, 4")
        e("v_mov_b32 v12, s78")
        e("buffer_store_dwordx4 v[8:11], v12, s[64:67], 0 offen")
    g.label("L_end")
    e("s_endpgm")

    out = HEADER
    out += f"; @launch grid=({NWG},1,1) block=({64 * WPG},1,1) lds={lds_total}\n"
    out += f""".amdgcn_target "amdgcn-amd-amdhsa--gfx950"
.text
.globl {NAME}_kernel
.p2align 8
.type {NAME}_kernel,@function
{NAME}_kernel:
"""
    out += "\n".join(g.L) + "\n"
    out += f""".section .rodata,"a"
.p2align 6
.amdhsa_kernel {NAME}_kernel
  .amdhsa_next_free_vgpr {a.nvgpr or NV}
  .amdhsa_next_free_sgpr 80
  .amdhsa_accum_offset {min(256, a.nvgpr or NV)}
  .amdhsa_group_segment_fixed_size 0
  .amdhsa_kernarg_size 80
  .amdhsa_user_sgpr_count 2
  .amdhsa_user_sgpr_kernarg_segment_ptr 1
  .amdhsa_system_sgpr_workgroup_id_x 1
.end_amdhsa_kernel
"""
    return out


if __name__ == "__main__":
    p = argparse.ArgumentParser()
    p.add_argument("-o", default=f"cdna_kernels/{NAME}.s")
    p.add_argument("--nb", type=int, default=4)
    p.add_argument("--wpg", type=int, default=4)
    p.add_argument("--hpol", default="")
    p.add_argument("--mpol", default="")
    p.add_argument("--nvgpr", type=int, default=0)
    p.add_argument("--dbg", type=int, default=0)
    p.add_argument("--align", type=int, default=0)
    a = p.parse_args()
    open(a.o, "w").write(build(a))
```

```python
import argparse
import re
import subprocess
import tempfile

NAME = "standalone__sequential_behavior_din__recsys"

HEADER = """; Kernarg layout for this problem (80 bytes, ptrs only, base s[0:1]):
;
"""


class Gen:
    def __init__(self):
        self.L = []
        self.vmq = []

    def e(self, s):
        self.L.append("    " + s)

    def c(self, s):
        self.L.append("    ; " + s)

    def label(self, s):
        self.L.append(s + ":")

    def vm(self, tag, s):
        self.e(s)
        self.vmq.append(tag)

    def waitvm(self, *tags, extra=""):
        idx = max(self.vmq.index(t) for t in tags)
        self.e(f"s_waitcnt vmcnt({len(self.vmq) - 1 - idx}){extra}")
        self.vmq = self.vmq[idx + 1:]


def vr(base, n):
    return f"v[{base}:{base + n - 1}]"


def offsets(lines):
    d = tempfile.mkdtemp()
    open(d + "/x.s", "w").write('.amdgcn_target "amdgcn-amd-amdhsa--gfx950"\n.text\n' + "\n".join(lines) + "\n")
    subprocess.run(["clang", "-x", "assembler", "-target", "amdgcn-amd-amdhsa", "-mcpu=gfx950", "-c", d + "/x.s", "-o", d + "/x.o"], check=True)
    out = subprocess.run(["llvm-objdump", "-d", "--mcpu=gfx950", d + "/x.o"], capture_output=True, text=True).stdout
    addr = [int(m.group(1), 16) for m in re.finditer(r"// ([0-9A-F]{12}):", out)]
    idx = [i for i, l in enumerate(lines) if l.startswith("    ") and not l.strip().startswith(";")]
    assert len(addr) == len(idx)
    return dict(zip(idx, addr))


def place_pad0(g):
    off = offsets(g.L)
    k = g.L.index("L_pad0:")
    if 512 <= off[k + 1] < 576:
        return
    del g.L[k:k + 2]
    off = offsets(g.L + ["L_pad0:"])
    i = min(j for j, o in off.items() if o >= 508)
    while g.L[i - 1].endswith(":"):
        i -= 1
    g.L[i:i] = ["    s_branch L_over0", "L_pad0:", "    s_branch L_back", "L_over0:"]


def build(a):
    g = Gen()
    e, c = g.e, g.c
    NB, WPG, R = 8, 4, 2
    NWG, NWAVE = 512, 2048
    NPAD = 2
    LIST = (7 * NB + 2 * NPAD) * 128
    LDSW = LIST + (NB + 2) * 128
    HS, MS, TS = NWAVE * 12800, NWAVE * 800, NWAVE * 64

    vJ, vHalf16, vLI, vRes = 0, 1, 2, 3
    vSt, vLC, vOut, vTmp = 4, 5, 6, 7
    A3, C3, A = 8, 12, 16
    CT = 20
    D0, D1 = 36, 52
    ACC = 68
    P, Q, TT = 76, 84, 92
    vIdx, vOff, vMk, vR = 100, 101, 102, 103
    E = 104
    IDX = 112
    vA, vN4, vPad, vP = 116, 117, 118, 119
    B1F = 120
    vThr = 135
    RH = 136
    T0 = 144
    MK = 148
    NV = MK + 16
    I16, CI = A, D0
    WAD, WBC, T, B1P = D1, D1 + 4, D1 + 8, D1 + 12
    vN, vHalf, vK = CT + 8, CT + 9, CT + 10
    t0, t1, t2, aM, aW2 = CT + 11, CT + 12, CT + 13, CT + 14, CT + 15
    aW0, aW1, aT = CT, CT + 1, CT + 2
    sH, sO = 24, 28
    sC = 32
    sT2, sT3, sThr, sLast = 48, 49, 50, 51
    sF1, sG = 52, 54
    sMo = 56
    sWave, sTmp, sScale = 61, 62, 64
    sF, sLane, sRet = 66, 68, 70
    sW = 76
    sI, sPos, sLpos, sBld, sRow, sOoff, sSel0, sSel1, sNew = range(80, 89)
    sDbg = 92
    R_ = f"s[{sRet}:{sRet + 1}]"

    def pad(k, skip=True):
        if skip:
            e(f"s_branch L_over{k}")
        g.label(f"L_pad{k}")
        e("s_branch L_back")
        if skip:
            g.label(f"L_over{k}")

    def switch(bit):
        e(f"s_bitcmp1_b64 s[{sG}:{sG + 1}], {bit}")
        e(f"s_cselect_b32 s{sTmp}, {HS}, 0")
        e(f"s_add_u32 s{sH}, s{sH}, s{sTmp}")
        e(f"s_addc_u32 s{sH + 1}, s{sH + 1}, 0")

    def gather(buf, off=vOff):
        e(f"buffer_load_dwordx4 {vr(buf, 4)}, v{off}, s[{sH}:{sH + 3}], 0 offen nt")

    def mkA():
        for q in range(4):
            e(f"v_pk_fma_f32 {vr(TT + 2 * q, 2)}, {vr(TT + 2 * q, 2)}, {vr(Q + 2 * q, 2)}, {vr(P + 2 * q, 2)}")
        for q in range(4):
            e(f"v_cvt_pk_bf16_f32 v{A + q}, v{TT + 2 * q}, v{TT + 2 * q + 1}")

    def mfma1(buf, Dst):
        e(f"v_mfma_f32_32x32x16_bf16 {vr(Dst, 16)}, {vr(A, 4)}, {vr(buf, 4)}, {vr(CT, 16)}")

    e("s_load_dwordx16 s[4:19], s[0:1], 0")
    e(f"s_cmpk_ge_u32 s2, {NWG}")
    e("s_cbranch_scc1 L_end")
    if a.stamps:
        e("s_memrealtime s[96:97]")
        e(f"s_load_dwordx2 s[{sDbg}:{sDbg + 1}], s[0:1], 72")
        e("s_mov_b32 s23, s2")
    e("s_setprio 3")
    e(f"v_lshrrev_b32 v{vTmp}, 6, v0")
    e(f"v_and_b32 v{vJ}, 63, v0")
    e(f"v_readfirstlane_b32 s{sWave}, v{vTmp}")
    e(f"v_and_b32 v{vN}, 31, v{vJ}")
    e(f"v_lshrrev_b32 v{vHalf}, 5, v{vJ}")
    c("masks: two rows per load, 8 positions per lane, 25 lanes per row, the other lanes out of range")
    e(f"v_cmp_gt_u32 vcc, 25, v{vN}")
    e(f"v_mul_u32_u24 v{t0}, 25, v{vHalf}")
    e(f"v_add_u32 v{t2}, v{t0}, v{vN}")
    c("instruction prefetch: the waves of the upper half of the grid step to four far points of the code and")
    c("back, so that those lines are fetched before the memory system is busy (speed only)")
    e("s_bitcmp1_b32 s2, 8")
    e(f"s_cselect_b32 s{sTmp}, s{sWave}, 7")
    for k in range(4):
        e(f"s_cmp_eq_u32 s{sTmp}, {k}")
        e(f"s_cbranch_scc1 L_pad{k}")
    g.label("L_back")
    e(f"v_lshlrev_b32 v{aM}, 4, v{t2}")
    e(f"v_lshlrev_b32 v{vHalf16}, 4, v{vHalf}")
    e(f"v_cndmask_b32 v{aM}, 2.0, v{aM}, vcc")
    c("workgroups that share an XCD under round-robin dispatch take neighbouring rows (speed only)")
    e("s_and_b32 s3, s2, 7")
    e("s_lshr_b32 s2, s2, 3")
    e("s_lshl_b32 s3, s3, 6")
    e("s_or_b32 s2, s2, s3")
    e(f"s_lshl2_add_u32 s3, s2, s{sWave}")
    e("s_mul_i32 s21, s3, 800")
    e("s_lshl_b32 s20, s21, 4")
    e("s_lshl_b32 s22, s3, 6")
    e(f"s_mov_b32 s{sMo}, {MS}")
    e(f"s_lshl_b32 s{sMo + 1}, s{sMo}, 1")
    e(f"s_add_u32 s{sMo + 2}, s{sMo + 1}, s{sMo}")
    e(f"s_mov_b32 s{sW + 3}, 0x20000")
    e(f"s_mov_b32 s{sH + 3}, 0x20000")
    e(f"s_movk_i32 s{sH + 2}, 12800")
    e(f"s_add_u32 s{sW + 2}, s{sMo + 2}, 800")
    c("w1 rows: k(n) = n with bits 2 and 3 swapped")
    e(f"v_lshrrev_b32 v{t0}, 1, v{vN}")
    e(f"v_xor_b32 v{t0}, v{t0}, v{vN}")
    e(f"v_and_b32 v{t0}, 4, v{t0}")
    e(f"v_mul_u32_u24 v{t0}, 3, v{t0}")
    e(f"v_xor_b32 v{vK}, v{t0}, v{vN}")
    e(f"v_lshl_add_u32 v{aW1}, v{vK}, 5, v{vHalf16}")
    e(f"v_and_b32 v{t0}, 16, v{vN}")
    e(f"v_lshl_add_u32 v{aW0}, v{t0}, 6, v{aW1}")
    c("target rows of the wave in the columns n & 7")
    e(f"v_mul_u32_u24 v{t0}, {hex(TS // 2 + 32)}, v{vN}")
    e(f"v_and_b32 v{t0}, {hex(3 * TS + 32)}, v{t0}")
    e(f"v_or_b32 v{aT}, v{t0}, v{vHalf16}")
    c("w2 operand: lanes whose bits 2 and 4 differ read out of range (zero)")
    e(f"v_lshrrev_b32 v{t0}, 2, v{vJ}")
    e(f"v_xor_b32 v{t0}, v{t0}, v{vJ}")
    e(f"v_and_b32 v{t0}, 4, v{t0}")
    e(f"v_lshl_add_u32 v{aW2}, v{t0}, 8, v{vHalf16}")
    e(f"v_mov_b32 v{C3}, 0")
    e(f"v_lshl_add_u32 v{vOff}, v{vN}, 5, v{vHalf16}")
    c("positions 200*half + 8*n .. +7 of a pair as packed 16-bit pairs")
    e(f"v_mul_u32_u24 v{t2}, 0x80008, v{t2}")
    e(f"s_mov_b32 s{sTmp}, 0x20002")
    e(f"v_add_u32 v{IDX}, 0x10000, v{t2}")
    for q in range(1, 4):
        e(f"v_add_u32 v{IDX + q}, s{sTmp}, v{IDX + q - 1}")
    e("s_waitcnt lgkmcnt(0)")
    e(f"s_add_u32 s{sW}, s8, s21")
    e(f"s_addc_u32 s{sW + 1}, s9, 0")
    for r in range(4):
        so = f"s{sMo + r - 1}" if r else "0"
        g.vm(f"MK{r}", f"buffer_load_dwordx4 {vr(MK + 4 * r, 4)}, v{aM}, s[{sW}:{sW + 3}], {so} offen nt")
    c("tile 0 holds the first 32 positions of the first row whatever their mask: it need not wait for the list")
    e(f"s_add_u32 s{sH}, s6, s20")
    e(f"s_addc_u32 s{sH + 1}, s7, 0")
    gather(T0)
    g.vmq.append("G")
    d = sW
    e(f"s_mov_b64 s[{d}:{d + 1}], s[10:11]")
    e(f"s_movk_i32 s{d + 2}, 2048")
    g.vm("wad", f"buffer_load_dwordx4 {vr(WAD, 4)}, v{aW0}, s[{d}:{d + 3}], 0 offen")
    g.vm("wbc", f"buffer_load_dwordx4 {vr(WBC, 4)}, v{aW1}, s[{d}:{d + 3}], 0 offen offset:512")
    e(f"s_add_u32 s{d}, s4, s22")
    e(f"s_addc_u32 s{d + 1}, s5, 0")
    e(f"s_mov_b32 s{d + 2}, {3 * TS + 64}")
    g.vm("t", f"buffer_load_dwordx4 {vr(T, 4)}, v{aT}, s[{d}:{d + 3}], 0 offen")
    e(f"s_mov_b64 s[{d}:{d + 1}], s[12:13]")
    e(f"s_mov_b32 s{d + 2}, 32")
    g.vm("b1", f"buffer_load_dwordx4 {vr(B1P, 4)}, v{vHalf16}, s[{d}:{d + 3}], 0 offen")
    e(f"s_mov_b64 s[{d}:{d + 1}], s[14:15]")
    g.vm("w2", f"buffer_load_dwordx4 {vr(A3, 4)}, v{aW2}, s[{d}:{d + 3}], 0 offen")
    e(f"s_mov_b64 s[{d}:{d + 1}], s[16:17]")
    e(f"s_mov_b32 s{d + 2}, 2")
    g.vm("b2", f"buffer_load_short_d16_hi v{C3}, off, s[{d}:{d + 3}], 0")
    e(f"s_mul_i32 s{sLpos}, s{sWave}, {LDSW}")
    e(f"v_lshlrev_b32 v{vN4}, 2, v{vN}")
    c("an entry counts when it is >= vThr, i.e. its mask is not zero; threshold 0 for the positions of tile 0")
    e(f"v_cmp_gt_u32 vcc, 4, v{vJ}")
    e(f"v_mov_b32 v{vThr}, 0x10000")
    e(f"v_mov_b32 v{vPad}, 0xffff")
    e(f"v_add_u32 v{vLI}, s{sLpos}, v{vN4}")
    e(f"v_cndmask_b32 v{vThr}, v{vThr}, 0, vcc")
    e(f"s_mov_b32 s{sSel0}, 0x05040100")
    e(f"s_mov_b32 s{sSel1}, 0x07060302")
    e(f"s_mov_b64 s[{sF}:{sF + 1}], 0")
    e(f"s_mov_b64 s[{sG}:{sG + 1}], 0")
    e(f"s_mov_b32 s{sPos}, -1")
    e(f"s_sub_u32 s{sLast}, s{sLpos}, 128")
    e(f"s_mov_b32 s{sBld}, 0")
    g.waitvm("MK0")
    e("s_branch L_bldA1")
    pad(0, skip=False)

    c("==== lists of the positions with a non-zero mask for the next pair of rows (lanes 0..24 / 32..56)")
    g.label("L_bld")
    e(f"s_set_gpr_idx_on s{sBld}, gpr_idx(SRC0)")
    for q in range(4):
        e(f"v_perm_b32 v{E + 2 * q}, v{MK + q}, v{IDX + q}, s{sSel0}")
        e(f"v_perm_b32 v{E + 2 * q + 1}, v{MK + q}, v{IDX + q}, s{sSel1}")
    e("s_set_gpr_idx_off")
    for q in range(8):
        e(f"v_cmp_le_u32 s[{sC + 2 * q}:{sC + 2 * q + 1}], v{vThr}, v{E + q}")
    for q in range(8):
        e(f"v_mbcnt_lo_u32_b32 v{vR}, s{sC + 2 * q}, {0 if q == 0 else f'v{vR}'}")
        e(f"v_mbcnt_hi_u32_b32 v{vR}, s{sC + 2 * q + 1}, v{vR}")
    e(f"v_lshl_add_u32 v{vA}, v{vR}, 2, s{sLpos}")
    e(f"v_readlane_b32 s{sT2}, v{vR}, 31")
    e(f"v_readlane_b32 s{sT3}, v{vR}, 63")
    e(f"v_mov_b32 v{vThr}, 0x10000")
    e(f"s_add_u32 s{sBld}, s{sBld}, 4")
    e("s_nop 0")
    e(f"s_add_u32 s{sTmp}, s{sT2}, 31")
    e(f"s_sub_u32 s{sT3}, s{sT3}, s{sT2}")
    e(f"s_lshr_b32 s{sTmp}, s{sTmp}, 5")
    e(f"s_max_u32 s{sTmp}, s{sTmp}, 1")
    e(f"s_add_u32 s{sPos}, s{sPos}, s{sTmp}")
    e(f"s_bitset1_b64 s[{sF}:{sF + 1}], s{sPos}")
    e(f"s_lshl_b32 s{sTmp}, s{sTmp}, 7")
    e(f"s_add_u32 s{sLast}, s{sLast}, s{sTmp}")
    e(f"v_add_u32 v{vP}, s{sLast}, v{vN4}")
    e(f"s_lshl_b32 s{sT2}, s{sT2}, 2")
    e(f"s_sub_u32 s{sT2}, s{sTmp}, s{sT2}")
    e(f"s_add_u32 s{sT3}, s{sT3}, 31")
    e(f"s_lshr_b32 s{sT3}, s{sT3}, 5")
    e(f"s_max_u32 s{sT3}, s{sT3}, 1")
    e(f"s_add_u32 s{sPos}, s{sPos}, s{sT3}")
    e(f"s_lshl_b32 s{sT3}, s{sT3}, 7")
    e(f"s_add_u32 s{sLast}, s{sLast}, s{sT3}")
    e("s_mov_b32 exec_lo, 0")
    e(f"v_add_u32 v{vA}, s{sT2}, v{vA}")
    e(f"v_add_u32 v{vP}, s{sLast}, v{vN4}")
    e("s_mov_b32 exec_lo, -1")
    c("pad entries in the last tile of both rows, then the real ones")
    e(f"ds_write_b32 v{vP}, v{vPad}")
    for q in range(8):
        e(f"s_mov_b64 exec, s[{sC + 2 * q}:{sC + 2 * q + 1}]")
        e(f"ds_write_b32 v{vA}, v{E + q}")
        if q < 7:
            e(f"v_add_u32 v{vA}, 4, v{vA}")
    e("s_mov_b64 exec, -1")
    e(f"s_bitset1_b64 s[{sF}:{sF + 1}], s{sPos}")
    e(f"s_add_u32 s{sLpos}, s{sLast}, 128")
    e(f"s_lshl_b64 s[{sF1}:{sF1 + 1}], s[{sF}:{sF + 1}], 1")
    e(f"s_sub_u32 s{sTmp}, s{sPos}, {R}")
    e(f"s_bitset1_b64 s[{sG}:{sG + 1}], s{sTmp}")
    c("the next pass is due at the step that reads the positions of a tile that is not listed yet")
    e(f"s_sub_u32 s{sTmp}, s{sTmp}, {1 + a.margin}")
    e(f"s_cmp_lt_u32 s{sBld}, 16")
    e(f"s_cselect_b32 s{sThr}, s{sTmp}, 64")
    e("s_cbranch_scc1 L_bldR")
    c("pad tiles behind the last list")
    e(f"v_lshl_add_u32 v{vP}, v{vJ}, 2, s{sLpos}")
    for k in range(NPAD):
        e(f"ds_write_b32 v{vP}, v{vPad} offset:{256 * k}")
    g.label("L_bldR")
    e(f"s_setpc_b64 {R_}")

    g.label("L_bldA")
    g.waitvm("MK3")
    g.label("L_bldA1")
    e(f"s_call_b64 {R_}, L_bld")
    e(f"s_cmp_lt_i32 s{sThr}, {-a.margin}")
    e("s_cbranch_scc1 L_bldA")
    c("tiles 0..3 are listed: gather tiles 1 and 2")
    e(f"ds_read_u16 v{TT + 1}, v{vLI} offset:128")
    e(f"ds_read_u16 v{TT + 2}, v{vLI} offset:256")
    e(f"ds_read_u16 v{vIdx}, v{vLI} offset:384")
    for t in (1, 2):
        if t == 2:
            switch(63)
        e(f"s_waitcnt lgkmcnt({3 - t})")
        e(f"v_lshl_add_u32 v{TT + t}, v{TT + t}, 5, v{vHalf16}")
        gather(RH + 4 * (t % 2), TT + t)
        g.vmq.append("G")
    e("s_setprio 1")
    c("B operand of the transposing MFMAs: lane n < 16 picks hidden unit k(n), so that a lane's 8 results are 8 consecutive units")
    e(f"v_lshlrev_b32 v{t0}, 3, v{vHalf}")
    e(f"v_sub_u32 v{t0}, v{vK}, v{t0}")
    e(f"v_and_b32 v{t1}, 1, v{t0}")
    e(f"v_lshlrev_b32 v{t1}, 4, v{t1}")
    e(f"v_mov_b32 v{t2}, 0x3f80")
    e(f"v_lshlrev_b32 v{t1}, v{t1}, v{t2}")
    e(f"v_lshrrev_b32 v{t0}, 1, v{t0}")
    for q in range(4):
        e(f"v_cmp_eq_u32 s[{sC + 2 * q}:{sC + 2 * q + 1}], {q}, v{t0}")
    c("rows 16..31 of the tile MFMA's A operand are the identity: seed 1/scale, the scale is applied later")
    e(f"v_mov_b32 v{t0}, 0xbf317218")
    e(f"s_mov_b32 s{sLane}, 0x10000")
    e(f"s_mov_b32 s{sLane + 1}, 0x1000000")
    for r in range(8):
        e(f"v_cndmask_b32 v{CI + r}, 0, v{t0}, s[{sLane}:{sLane + 1}]")
        if r < 7:
            e(f"s_lshl_b64 s[{sLane}:{sLane + 1}], s[{sLane}:{sLane + 1}], 1")
    for r in range(4):
        e(f"v_mov_b64 {vr(CI + 8 + 2 * r, 2)}, 0")
    for q in range(4):
        e(f"v_cndmask_b32 v{I16 + q}, 0, v{t1}, s[{sC + 2 * q}:{sC + 2 * q + 1}]")
    pad(1)
    c("LDS slots of the rows: c (64 B) and t (64 B) in f32")
    e(f"s_mul_i32 s{sTmp}, s{sWave}, {LDSW}")
    e(f"s_add_u32 s{sTmp}, s{sTmp}, {LIST}")
    e(f"v_lshl_add_u32 v{vLC}, v{vHalf}, 5, s{sTmp}")
    e(f"v_and_b32 v{t0}, 7, v{vN}")
    e(f"v_lshl_add_u32 v{vTmp}, v{t0}, 7, v{vLC}")

    X, Y = P, CT
    g.waitvm("wad", "wbc")
    c("Y = Wb^T | Wc^T, X = Wa^T | Wd^T")
    e(f"v_mfma_f32_32x32x16_bf16 {vr(Y, 16)}, {vr(WBC, 4)}, {vr(I16, 4)}, 0")
    e(f"v_mfma_f32_32x32x16_bf16 {vr(X, 16)}, {vr(WAD, 4)}, {vr(I16, 4)}, {vr(CI, 16)}")
    g.waitvm("t", "b1")
    TF = D1
    for q in range(4):
        e(f"v_lshlrev_b32 v{TF + 2 * q}, 16, v{T + q}")
        e(f"v_and_b32 v{TF + 2 * q + 1}, 0xffff0000, v{T + q}")
    e(f"ds_write_b128 v{vTmp}, {vr(TF, 4)} offset:64")
    e(f"ds_write_b128 v{vTmp}, {vr(TF + 4, 4)} offset:80")
    e(f"ds_read_b128 {vr(TT, 4)}, v{vLC} offset:64")
    e(f"ds_read_b128 {vr(TT + 4, 4)}, v{vLC} offset:80")
    for q in range(4):
        e(f"v_lshlrev_b32 v{B1F + 2 * q}, 16, v{B1P + q}")
        e(f"v_and_b32 v{B1F + 2 * q + 1}, 0xffff0000, v{B1P + q}")
    for q in range(4):
        e(f"v_cvt_pk_bf16_f32 v{A + q}, v{Y + 2 * q}, v{Y + 2 * q + 1}")
    for q in range(4):
        e(f"v_cvt_pk_bf16_f32 v{B1P + q}, -v{Y + 8 + 2 * q}, -v{Y + 9 + 2 * q}")
    c("P = -log2e * (Wa + Wc)^T (identity in the upper rows), Q = -log2e * Wd^T")
    for q in range(4):
        e(f"v_pk_add_f32 {vr(X + 2 * q, 2)}, {vr(X + 2 * q, 2)}, {vr(Y + 8 + 2 * q, 2)}")
    e(f"s_mov_b32 s{sScale}, 0xbfb8aa3b")
    for q in range(8):
        e(f"v_pk_mul_f32 {vr(X + 2 * q, 2)}, {vr(X + 2 * q, 2)}, s[{sScale}:{sScale + 1}] op_sel_hi:[1,0]")
    c("c = Wb^T t - Wc^T t + b1 for the 8 rows (columns)")
    e(f"v_mfma_f32_32x32x16_bf16 {vr(Y, 16)}, {vr(A, 4)}, {vr(T, 4)}, {vr(B1F, 16)}")
    e(f"v_mfma_f32_32x32x16_bf16 {vr(Y, 16)}, {vr(B1P, 4)}, {vr(T, 4)}, {vr(Y, 16)}")
    c("output offset: row j & 3 of a group of four, the element that the reduction leaves in lane quad j >> 2")
    o0 = vSt
    e(f"v_and_b32 v{vOut}, 8, v{vJ}")
    e(f"v_bfe_u32 v{o0}, v{vJ}, 5, 1")
    e(f"v_lshl_add_u32 v{vOut}, v{o0}, 2, v{vOut}")
    e(f"v_bfe_u32 v{o0}, v{vJ}, 2, 1")
    e(f"v_lshl_add_u32 v{vOut}, v{o0}, 1, v{vOut}")
    e(f"v_bfe_u32 v{o0}, v{vJ}, 4, 1")
    e(f"v_add_lshl_u32 v{vOut}, v{vOut}, v{o0}, 1")
    e(f"v_mul_u32_u24 v{o0}, {hex(TS // 2 + 32)}, v{vJ}")
    e(f"v_and_b32 v{o0}, {hex(TS + 32)}, v{o0}")
    e(f"v_or_b32 v{vOut}, v{vOut}, v{o0}")
    e(f"s_add_u32 s{sO}, s18, s22")
    e(f"s_addc_u32 s{sO + 1}, s19, 0")
    e(f"s_mov_b32 s{sO + 2}, {3 * TS + 64}")
    e(f"s_mov_b32 s{sO + 3}, 0x20000")
    for q in range(4):
        e(f"v_mov_b64 {vr(ACC + 2 * q, 2)}, 0")
    e(f"v_mov_b32 v{vMk}, 0")
    g.waitvm("w2", "b2", extra=" lgkmcnt(0)")
    for q in range(4):
        e(f"v_pk_mul_f32 {vr(Y + 2 * q, 2)}, {vr(Y + 2 * q, 2)}, s[{sScale}:{sScale + 1}] op_sel_hi:[1,0]")
    e(f"ds_write_b128 v{vTmp}, {vr(Y, 4)}")
    e(f"ds_write_b128 v{vTmp}, {vr(Y + 4, 4)} offset:16")
    for r in range(4):
        e(f"v_mov_b64 {vr(CT + 8 + 2 * r, 2)}, 0")
    e("s_waitcnt lgkmcnt(0)")
    e(f"ds_read_b128 {vr(CT, 4)}, v{vLC}")
    e(f"ds_read_b128 {vr(CT + 4, 4)}, v{vLC} offset:16")
    mkA()
    e(f"ds_read_b128 {vr(TT, 4)}, v{vLC} offset:{128 + 64}")
    e(f"ds_read_b128 {vr(TT + 4, 4)}, v{vLC} offset:{128 + 80}")
    for r in range(1, 4):
        e(f"v_mov_b32 v{C3 + r}, v{C3}")
    e(f"s_mov_b32 s{sLane}, 0x11111111")
    e(f"s_mov_b32 s{sLane + 1}, 0x11111111")
    e(f"s_mov_b32 s{sRow}, 0")
    e(f"s_mov_b32 s{sOoff}, {2 * TS}")
    e(f"s_mov_b32 s{sI}, 0")
    e(f"s_mov_b32 s{sNew}, 1")
    if a.stamps == 1:
        e("s_memrealtime s[98:99]")
    e("s_waitcnt lgkmcnt(0)")
    if a.stamps == 3:
        e("s_memrealtime s[100:101]")
        e("s_waitcnt lgkmcnt(0)")
        e(f"v_mov_b32 v{NV}, 0")
        e(f"v_writelane_b32 v{NV}, s100, 0")
        e(f"v_writelane_b32 v{NV}, s96, 63")
    mfma1(T0, D0)
    c("the workgroup dispatched second onto a CU lags behind: it keeps the higher priority (speed only)")
    e("s_bitcmp1_b32 s2, 5")
    e("s_cbranch_scc1 L_yp")
    e("s_setprio 0")
    g.label("L_yp")
    pad(2)
    e("s_nop 8")

    def S1(Xb):
        for r in range(8):
            e(f"v_exp_f32 v{Xb + r}, v{Xb + r}")

    def step5(Yb):
        e(f"v_mul_f32 v{Yb + 4}, v{Yb + 4}, v{vMk}")
        for q in range(4):
            e(f"v_pk_fma_f32 {vr(ACC + 2 * q, 2)}, {vr(Yb + 8 + 2 * q, 2)}, {vr(Yb + 4, 2)}, {vr(ACC + 2 * q, 2)} op_sel_hi:[1,0,1]")

    def S2(p, Yb):
        e(f"s_bitcmp1_b64 s[{sF1}:{sF1 + 1}], s{sI}")
        e("s_waitcnt lgkmcnt(0)")
        if a.stamps == 3:
            e(f"s_mov_b32 m0, s{sI}")
            e(f"v_writelane_b32 v{NV}, s90, m0")
        step5(Yb)
        e(f"s_cbranch_scc1 L_red{p}")
        g.label(f"L_rred{p}")

    def S38(p, Xb, Yb):
        buf = RH + 4 * ((p + 1) % 2)
        e(f"s_bitcmp1_b64 s[{sF}:{sF + 1}], s{sI}")
        for q in range(4):
            e(f"v_pk_add_f32 {vr(Xb + 2 * q, 2)}, {vr(Xb + 2 * q, 2)}, 1.0 op_sel_hi:[1,0]")
        e(f"s_cbranch_scc1 L_new{p}")
        g.label(f"L_rnew{p}")
        e(f"v_lshl_add_u32 v{vOff}, v{vIdx}, 5, v{vHalf16}")
        switch(f"s{sI}")
        e("s_waitcnt vmcnt(1)")
        if a.stamps == 3:
            e("s_memrealtime s[90:91]")
        mfma1(buf, Yb)
        gather(buf)
        e(f"s_cmp_ge_i32 s{sI}, s{sThr}")
        for r in range(8):
            e(f"v_rcp_f32 v{Xb + r}, v{Xb + r}")
        e(f"s_cbranch_scc1 L_sbld{p}")
        g.label(f"L_rbld{p}")
        for q in range(4):
            e(f"v_cvt_pk_bf16_f32 v{Xb + q}, v{Xb + 2 * q}, v{Xb + 2 * q + 1}")
        e(f"ds_read_u16 v{vIdx}, v{vLI} offset:{(p + 4) * 128}")
        e(f"ds_read_u16_d16_hi v{vMk}, v{vLI} offset:{p * 128 + 2}")
        e(f"v_mfma_f32_16x16x32_bf16 {vr(Xb + 4, 4)}, {vr(A3, 4)}, {vr(Xb, 4)}, {vr(C3, 4)}")
        e(f"s_add_u32 s{sI}, s{sI}, 1")
        if p == 1:
            e(f"v_add_u32 v{vLI}, 256, v{vLI}")

    c("step i: sigmoids of tile i, weighted sum of tile i-1, MFMA of tile i+1, gather of tile i+3")
    S1(D0)
    g.label("L_loop")
    S38(0, D0, D1)
    S1(D1)
    S2(1, D0)
    S38(1, D1, D0)
    S1(D0)
    S2(0, D1)
    e(f"s_cmp_lt_u32 s{sI}, 60")
    e("s_cbranch_scc1 L_loop")
    e("s_endpgm")
    pad(3, skip=False)

    for p in range(2):
        g.label(f"L_sbld{p}")
        e(f"s_call_b64 {R_}, L_bld")
        e(f"s_branch L_rbld{p}")

    dpp = "row_mask:0xf bank_mask:"

    def reduce_row(final):
        for r in range(4):
            e(f"v_add_f32_dpp v{ACC + r}, v{ACC + r}, v{ACC + r} row_ror:8 {dpp}0xf")
        for r in range(4):
            e(f"v_add_f32_dpp v{ACC + r}, v{ACC + 4 + r}, v{ACC + 4 + r} row_ror:8 {dpp}0xc")
        for r in range(2):
            e(f"v_add_f32_dpp v{ACC + r}, v{ACC + r}, v{ACC + r} row_half_mirror {dpp}0xf")
        for r in range(2):
            e(f"v_add_f32_dpp v{ACC + r}, v{ACC + 2 + r}, v{ACC + 2 + r} row_half_mirror {dpp}0xa")
        if final:
            e("s_nop 1")
        else:
            e(f"v_mov_b64 {vr(ACC + 4, 2)}, 0")
            e(f"v_mov_b64 {vr(ACC + 6, 2)}, 0")
        e(f"v_permlane16_swap_b32 v{ACC}, v{ACC + 1}")
        e("s_nop 0" if final else f"v_mov_b64 {vr(ACC + 2, 2)}, 0")
        e(f"v_add_f32 v{vSt}, v{ACC}, v{ACC + 1}")
        if final:
            e("s_nop 1")
        else:
            e(f"v_mov_b64 {vr(ACC, 2)}, 0")
            e(f"s_add_u32 s{sRow}, s{sRow}, 1")
        e(f"v_add_f32_dpp v{vSt}, v{vSt}, v{vSt} quad_perm:[1,0,3,2] {dpp}0xf")
        if final:
            e("s_nop 1")
        else:
            e("s_nop 0")
            e(f"s_cmp_eq_u32 s{sRow}, 4")
        e(f"v_add_f32_dpp v{vSt}, v{vSt}, v{vSt} quad_perm:[2,3,0,1] {dpp}0xf")
        e(f"v_cndmask_b32 v{vRes}, v{vRes}, v{vSt}, s[{sLane}:{sLane + 1}]")

    def new_row(p):
        c("the next tile starts a new row: switch A and c")
        g.label(f"L_new{p}")
        e(f"s_cmp_eq_u32 s{sNew}, {NB}")
        e(f"s_cbranch_scc1 L_last{p}")
        e(f"v_add_u32 v{vLC}, 128, v{vLC}")
        e(f"ds_read_b128 {vr(CT, 4)}, v{vLC}")
        e(f"ds_read_b128 {vr(CT + 4, 4)}, v{vLC} offset:16")
        mkA()
        e(f"ds_read_b128 {vr(TT, 4)}, v{vLC} offset:{128 + 64}")
        e(f"ds_read_b128 {vr(TT + 4, 4)}, v{vLC} offset:{128 + 80}")
        e(f"s_add_u32 s{sNew}, s{sNew}, 1")
        e("s_waitcnt lgkmcnt(2)")
        e(f"s_branch L_rnew{p}")

    def red_row(p):
        c("a row is complete: sum the 32 columns; lane j keeps row j & 3")
        g.label(f"L_red{p}")
        reduce_row(False)
        e(f"s_cbranch_scc1 L_four{p}")
        e(f"s_lshl_b64 s[{sLane}:{sLane + 1}], s[{sLane}:{sLane + 1}], 1")
        e(f"s_branch L_rred{p}")
        g.label(f"L_four{p}")
        e(f"v_mov_b32 v{vTmp}, v{vRes}")
        e(f"s_lshr_b64 s[{sLane}:{sLane + 1}], s[{sLane}:{sLane + 1}], 3")
        e(f"s_branch L_rred{p}")

    for p in range(2):
        new_row(p)
        red_row(p)

    c("==== the last tile of the wave: no further tile to overlap with")
    for p, Xb in ((1, D1), (0, D0)):
        g.label(f"L_last{p}")
        e(f"ds_read_u16_d16_hi v{vMk}, v{vLI} offset:{p * 128 + 2}")
        for r in range(8):
            e(f"v_rcp_f32 v{Xb + r}, v{Xb + r}")
        e("s_nop 0")
        for q in range(4):
            e(f"v_cvt_pk_bf16_f32 v{Xb + q}, v{Xb + 2 * q}, v{Xb + 2 * q + 1}")
        e("s_nop 1")
        e(f"v_mfma_f32_16x16x32_bf16 {vr(Xb + 4, 4)}, {vr(A3, 4)}, {vr(Xb, 4)}, {vr(C3, 4)}")
        e("s_nop 6")
        e("s_waitcnt lgkmcnt(0)")
        step5(Xb)
        e("s_branch L_fin" if p else "s_nop 0")
    g.label("L_fin")
    reduce_row(True)
    e(f"v_cvt_pk_bf16_f32 v{vTmp}, v{vTmp}, v{vRes}")
    e(f"buffer_store_short v{vTmp}, v{vOut}, s[{sO}:{sO + 3}], 0 offen")
    e(f"buffer_store_short_d16_hi v{vTmp}, v{vOut}, s[{sO}:{sO + 3}], s{sOoff} offen")
    if a.stamps:
        e(f"s_lshl2_add_u32 s3, s23, s{sWave}")
        e(f"s_mov_b32 s{sDbg + 2}, 0x1000000")
        e(f"s_mov_b32 s{sDbg + 3}, 0x20000")
        e("s_memrealtime s[90:91]")
    if a.stamps == 3:
        e("s_lshl_b32 s78, s3, 8")
        e("v_lshl_add_u32 v12, v0, 2, s78")
        e("s_waitcnt lgkmcnt(0)")
        e(f"v_writelane_b32 v{NV}, s90, 62")
        e(f"v_writelane_b32 v{NV}, s{sPos}, 61")
        e(f"buffer_store_dword v{NV}, v12, s[{sDbg}:{sDbg + 3}], 0 offen")
    if a.stamps == 1:
        e("s_waitcnt lgkmcnt(0)")
        e("v_mov_b32 v8, s96")
        e("v_mov_b32 v9, s98")
        e("v_mov_b32 v10, s98")
        e("v_mov_b32 v11, s90")
        e("s_lshl_b32 s78, s3, 4")
        e("v_mov_b32 v12, s78")
        e(f"buffer_store_dwordx4 v[8:11], v12, s[{sDbg}:{sDbg + 3}], 0 offen")
    g.label("L_end")
    e("s_endpgm")
    place_pad0(g)

    out = HEADER
    out += f"; @launch grid=({NWG},1,1) block=({64 * WPG},1,1) lds={LDSW * WPG}\n"
    out += f""".amdgcn_target "amdgcn-amd-amdhsa--gfx950"
.text
.globl {NAME}_kernel
.p2align 8
.type {NAME}_kernel,@function
{NAME}_kernel:
"""
    out += "\n".join(g.L) + "\n"
    out += f""".section .rodata,"a"
.p2align 6
.amdhsa_kernel {NAME}_kernel
  .amdhsa_next_free_vgpr 256
  .amdhsa_next_free_sgpr 102
  .amdhsa_accum_offset 256
  .amdhsa_group_segment_fixed_size 0
  .amdhsa_kernarg_size 80
  .amdhsa_user_sgpr_count 2
  .amdhsa_user_sgpr_kernarg_segment_ptr 1
  .amdhsa_system_sgpr_workgroup_id_x 1
.end_amdhsa_kernel
"""
    return out


if __name__ == "__main__":
    p = argparse.ArgumentParser()
    p.add_argument("-o", default=f"cdna_kernels/{NAME}.s")
    p.add_argument("--margin", type=int, default=1)
    p.add_argument("--stamps", type=int, default=0)
    a = p.parse_args()
    open(a.o, "w").write(build(a))
```

```python
import argparse
import re
import subprocess
import tempfile

NAME = "standalone__sequential_behavior_din__recsys"

HEADER = """; Kernarg layout for this problem (80 bytes, ptrs only, base s[0:1]):
;
"""


class Gen:
    def __init__(self):
        self.L = []
        self.vmq = []

    def e(self, s):
        self.L.append("    " + s)

    def c(self, s):
        self.L.append("    ; " + s)

    def label(self, s):
        self.L.append(s + ":")

    def vm(self, tag, s):
        self.e(s)
        self.vmq.append(tag)

    def waitvm(self, *tags, extra=""):
        idx = max(self.vmq.index(t) for t in tags)
        self.e(f"s_waitcnt vmcnt({len(self.vmq) - 1 - idx}){extra}")
        self.vmq = self.vmq[idx + 1:]


def vr(base, n):
    return f"v[{base}:{base + n - 1}]"


def offsets(lines):
    d = tempfile.mkdtemp()
    open(d + "/x.s", "w").write('.amdgcn_target "amdgcn-amd-amdhsa--gfx950"\n.text\n' + "\n".join(lines) + "\n")
    subprocess.run(["clang", "-x", "assembler", "-target", "amdgcn-amd-amdhsa", "-mcpu=gfx950", "-c", d + "/x.s", "-o", d + "/x.o"], check=True)
    out = subprocess.run(["llvm-objdump", "-d", "--mcpu=gfx950", d + "/x.o"], capture_output=True, text=True).stdout
    addr = [int(m.group(1), 16) for m in re.finditer(r"// ([0-9A-F]{12}):", out)]
    idx = [i for i, l in enumerate(lines) if l.startswith("    ") and not l.strip().startswith(";")]
    assert len(addr) == len(idx)
    return dict(zip(idx, addr))


def place_pad0(g):
    off = offsets(g.L)
    k = g.L.index("L_pad0:")
    if 512 <= off[k + 1] < 576:
        return
    del g.L[k:k + 2]
    off = offsets(g.L + ["L_pad0:"])
    i = min(j for j, o in off.items() if o >= 508)
    while g.L[i - 1].endswith(":"):
        i -= 1
    g.L[i:i] = ["    s_branch L_over0", "L_pad0:", "    s_branch L_back", "L_over0:"]


def build(a):
    g = Gen()
    e, c = g.e, g.c
    NB, WPG, R = 8, 4, 2
    NWG, NWAVE = 512, 2048
    NPAD = 2
    LIST = (7 * NB + 2 * NPAD) * 128
    LDSW = LIST + (NB + 2) * 128
    HS, MS, TS = NWAVE * 12800, NWAVE * 800, NWAVE * 64

    vJ, vHalf16, vLI, vRes = 0, 1, 2, 3
    vSt, vLC, vOut, vTmp = 4, 5, 6, 7
    A3, C3, A = 8, 12, 16
    CT = 20
    D0, D1 = 36, 52
    ACC = 68
    P, Q, TT = 76, 84, 92
    vIdx, vOff, vMk, vR = 100, 101, 102, 103
    E = 104
    IDX = 112
    vA, vN4, vPad, vP = 116, 117, 118, 119
    B1F = 120
    vThr = 135
    RH = 136
    T0 = 144
    MK = 148
    NV = MK + 16
    I16, CI = A, D0
    WAD, WBC, T, B1P = D1, D1 + 4, D1 + 8, D1 + 12
    vN, vHalf, vK = CT + 8, CT + 9, CT + 10
    t0, t1, t2, aM, aW2 = CT + 11, CT + 12, CT + 13, CT + 14, CT + 15
    aW0, aW1, aT = CT, CT + 1, CT + 2
    sH, sO = 24, 28
    sC = 32
    sT2, sT3, sThr, sLast = 48, 49, 50, 51
    sF1, sG = 52, 54
    sMo = 56
    sWave, sTmp, sScale = 61, 62, 64
    sF, sLane, sRet = 66, 68, 70
    sW = 76
    sI, sPos, sLpos, sBld, sRow, sOoff, sSel0, sSel1, sNew = range(80, 89)
    sDbg = 92
    R_ = f"s[{sRet}:{sRet + 1}]"

    def pad(k, skip=True):
        if skip:
            e(f"s_branch L_over{k}")
        g.label(f"L_pad{k}")
        e("s_branch L_back")
        if skip:
            g.label(f"L_over{k}")

    def switch(bit):
        e(f"s_bitcmp1_b64 s[{sG}:{sG + 1}], {bit}")
        e(f"s_cselect_b32 s{sTmp}, {HS}, 0")
        e(f"s_add_u32 s{sH}, s{sH}, s{sTmp}")
        e(f"s_addc_u32 s{sH + 1}, s{sH + 1}, 0")

    def gather(buf, off=vOff):
        e(f"buffer_load_dwordx4 {vr(buf, 4)}, v{off}, s[{sH}:{sH + 3}], 0 offen nt")

    def mkA():
        for q in range(4):
            e(f"v_pk_fma_f32 {vr(TT + 2 * q, 2)}, {vr(TT + 2 * q, 2)}, {vr(Q + 2 * q, 2)}, {vr(P + 2 * q, 2)}")
        for q in range(4):
            e(f"v_cvt_pk_bf16_f32 v{A + q}, v{TT + 2 * q}, v{TT + 2 * q + 1}")

    def mfma1(buf, Dst):
        e(f"v_mfma_f32_32x32x16_bf16 {vr(Dst, 16)}, {vr(A, 4)}, {vr(buf, 4)}, {vr(CT, 16)}")

    e(f"s_cmpk_ge_u32 s2, {NWG}")
    e("s_cbranch_scc1 L_end")
    e("s_load_dwordx16 s[4:19], s[0:1], 0")
    if a.stamps:
        e("s_memrealtime s[96:97]")
        e(f"s_load_dwordx2 s[{sDbg}:{sDbg + 1}], s[0:1], 72")
        e("s_mov_b32 s23, s2")
    e("s_memrealtime s[96:97]")
    e("s_setprio 3")
    e(f"v_lshrrev_b32 v{vTmp}, 6, v0")
    e(f"v_and_b32 v{vJ}, 63, v0")
    e(f"v_readfirstlane_b32 s{sWave}, v{vTmp}")
    e(f"v_and_b32 v{vN}, 31, v{vJ}")
    e(f"v_lshrrev_b32 v{vHalf}, 5, v{vJ}")
    c("masks: two rows per load, 8 positions per lane, 25 lanes per row, the other lanes out of range")
    e(f"v_cmp_gt_u32 vcc, 25, v{vN}")
    e(f"v_mul_u32_u24 v{t0}, 25, v{vHalf}")
    e(f"v_add_u32 v{t2}, v{t0}, v{vN}")
    c("instruction prefetch: the waves of the upper half of the grid step to four far points of the code and")
    c("back, so that those lines are fetched before the memory system is busy (speed only)")
    e("s_bitcmp1_b32 s2, 8")
    e(f"s_cselect_b32 s{sTmp}, s{sWave}, 7")
    for k in range(4):
        e(f"s_cmp_eq_u32 s{sTmp}, {k}")
        e(f"s_cbranch_scc1 L_pad{k}")
    g.label("L_back")
    e(f"v_lshlrev_b32 v{aM}, 4, v{t2}")
    e(f"v_lshlrev_b32 v{vHalf16}, 4, v{vHalf}")
    e(f"v_cndmask_b32 v{aM}, 2.0, v{aM}, vcc")
    c("workgroups that share an XCD under round-robin dispatch take neighbouring rows (speed only)")
    e("s_and_b32 s3, s2, 7")
    e("s_lshr_b32 s2, s2, 3")
    e("s_lshl_b32 s3, s3, 6")
    e("s_or_b32 s2, s2, s3")
    e(f"s_lshl2_add_u32 s3, s2, s{sWave}")
    e("s_mul_i32 s21, s3, 800")
    e("s_lshl_b32 s20, s21, 4")
    e("s_lshl_b32 s22, s3, 6")
    e(f"s_mov_b32 s{sMo}, {MS}")
    e(f"s_lshl_b32 s{sMo + 1}, s{sMo}, 1")
    e(f"s_add_u32 s{sMo + 2}, s{sMo + 1}, s{sMo}")
    e(f"s_mov_b32 s{sW + 3}, 0x20000")
    e(f"s_mov_b32 s{sH + 3}, 0x20000")
    e(f"s_movk_i32 s{sH + 2}, 12800")
    e(f"s_add_u32 s{sW + 2}, s{sMo + 2}, 800")
    c("w1 rows: k(n) = n with bits 2 and 3 swapped")
    e(f"v_lshrrev_b32 v{t0}, 1, v{vN}")
    e(f"v_xor_b32 v{t0}, v{t0}, v{vN}")
    e(f"v_and_b32 v{t0}, 4, v{t0}")
    e(f"v_mul_u32_u24 v{t0}, 3, v{t0}")
    e(f"v_xor_b32 v{vK}, v{t0}, v{vN}")
    e(f"v_lshl_add_u32 v{aW1}, v{vK}, 5, v{vHalf16}")
    e(f"v_and_b32 v{t0}, 16, v{vN}")
    e(f"v_lshl_add_u32 v{aW0}, v{t0}, 6, v{aW1}")
    c("target rows of the wave in the columns n & 7")
    e(f"v_mul_u32_u24 v{t0}, {hex(TS // 2 + 32)}, v{vN}")
    e(f"v_and_b32 v{t0}, {hex(3 * TS + 32)}, v{t0}")
    e(f"v_or_b32 v{aT}, v{t0}, v{vHalf16}")
    c("w2 operand: lanes whose bits 2 and 4 differ read out of range (zero)")
    e(f"v_lshrrev_b32 v{t0}, 2, v{vJ}")
    e(f"v_xor_b32 v{t0}, v{t0}, v{vJ}")
    e(f"v_and_b32 v{t0}, 4, v{t0}")
    e(f"v_lshl_add_u32 v{aW2}, v{t0}, 8, v{vHalf16}")
    e(f"v_mov_b32 v{C3}, 0")
    e(f"v_lshl_add_u32 v{vOff}, v{vN}, 5, v{vHalf16}")
    c("positions 200*half + 8*n .. +7 of a pair as packed 16-bit pairs")
    e(f"v_mul_u32_u24 v{t2}, 0x80008, v{t2}")
    e(f"s_mov_b32 s{sTmp}, 0x20002")
    e(f"v_add_u32 v{IDX}, 0x10000, v{t2}")
    for q in range(1, 4):
        e(f"v_add_u32 v{IDX + q}, s{sTmp}, v{IDX + q - 1}")
    e("s_waitcnt lgkmcnt(0)")
    if a.probe == 6:
        e("s_memrealtime s[100:101]")
        e("s_waitcnt lgkmcnt(0)")
    e(f"s_add_u32 s{sW}, s8, s21")
    e(f"s_addc_u32 s{sW + 1}, s9, 0")
    for r in range(4):
        so = f"s{sMo + r - 1}" if r else "0"
        g.vm(f"MK{r}", f"buffer_load_dwordx4 {vr(MK + 4 * r, 4)}, v{aM}, s[{sW}:{sW + 3}], {so} offen nt")
    c("tile 0 holds the first 32 positions of the first row whatever their mask: it need not wait for the list")
    e(f"s_add_u32 s{sH}, s6, s20")
    e(f"s_addc_u32 s{sH + 1}, s7, 0")
    gather(T0)
    g.vmq.append("G")
    d = sW
    e(f"s_mov_b64 s[{d}:{d + 1}], s[10:11]")
    e(f"s_movk_i32 s{d + 2}, 2048")
    g.vm("wad", f"buffer_load_dwordx4 {vr(WAD, 4)}, v{aW0}, s[{d}:{d + 3}], 0 offen")
    g.vm("wbc", f"buffer_load_dwordx4 {vr(WBC, 4)}, v{aW1}, s[{d}:{d + 3}], 0 offen offset:512")
    e(f"s_add_u32 s{d}, s4, s22")
    e(f"s_addc_u32 s{d + 1}, s5, 0")
    e(f"s_mov_b32 s{d + 2}, {3 * TS + 64}")
    g.vm("t", f"buffer_load_dwordx4 {vr(T, 4)}, v{aT}, s[{d}:{d + 3}], 0 offen")
    e(f"s_mov_b64 s[{d}:{d + 1}], s[12:13]")
    e(f"s_mov_b32 s{d + 2}, 32")
    g.vm("b1", f"buffer_load_dwordx4 {vr(B1P, 4)}, v{vHalf16}, s[{d}:{d + 3}], 0 offen")
    e(f"s_mov_b64 s[{d}:{d + 1}], s[14:15]")
    g.vm("w2", f"buffer_load_dwordx4 {vr(A3, 4)}, v{aW2}, s[{d}:{d + 3}], 0 offen")
    e(f"s_mov_b64 s[{d}:{d + 1}], s[16:17]")
    e(f"s_mov_b32 s{d + 2}, 2")
    g.vm("b2", f"buffer_load_short_d16_hi v{C3}, off, s[{d}:{d + 3}], 0")
    e(f"s_mul_i32 s{sLpos}, s{sWave}, {LDSW}")
    e(f"v_lshlrev_b32 v{vN4}, 2, v{vN}")
    c("an entry counts when it is >= vThr, i.e. its mask is not zero; threshold 0 for the positions of tile 0")
    e(f"v_cmp_gt_u32 vcc, 4, v{vJ}")
    e(f"v_mov_b32 v{vThr}, 0x10000")
    e(f"v_mov_b32 v{vPad}, 0xffff")
    e(f"v_add_u32 v{vLI}, s{sLpos}, v{vN4}")
    e(f"v_cndmask_b32 v{vThr}, v{vThr}, 0, vcc")
    e(f"s_mov_b32 s{sSel0}, 0x05040100")
    e(f"s_mov_b32 s{sSel1}, 0x07060302")
    e(f"s_mov_b64 s[{sF}:{sF + 1}], 0")
    e(f"s_mov_b64 s[{sG}:{sG + 1}], 0")
    e(f"s_mov_b32 s{sPos}, -1")
    e(f"s_sub_u32 s{sLast}, s{sLpos}, 128")
    e(f"s_mov_b32 s{sBld}, 0")
    g.waitvm("MK0")
    if a.probe == 4:
        e("s_memrealtime s[100:101]")
        e("s_waitcnt lgkmcnt(0)")
    e("s_branch L_bldA1")
    pad(0, skip=False)

    c("==== lists of the positions with a non-zero mask for the next pair of rows (lanes 0..24 / 32..56)")
    g.label("L_bld")
    e(f"s_set_gpr_idx_on s{sBld}, gpr_idx(SRC0)")
    for q in range(4):
        e(f"v_perm_b32 v{E + 2 * q}, v{MK + q}, v{IDX + q}, s{sSel0}")
        e(f"v_perm_b32 v{E + 2 * q + 1}, v{MK + q}, v{IDX + q}, s{sSel1}")
    e("s_set_gpr_idx_off")
    for q in range(8):
        e(f"v_cmp_le_u32 s[{sC + 2 * q}:{sC + 2 * q + 1}], v{vThr}, v{E + q}")
    for q in range(8):
        e(f"v_mbcnt_lo_u32_b32 v{vR}, s{sC + 2 * q}, {0 if q == 0 else f'v{vR}'}")
        e(f"v_mbcnt_hi_u32_b32 v{vR}, s{sC + 2 * q + 1}, v{vR}")
    e(f"v_lshl_add_u32 v{vA}, v{vR}, 2, s{sLpos}")
    e(f"v_readlane_b32 s{sT2}, v{vR}, 31")
    e(f"v_readlane_b32 s{sT3}, v{vR}, 63")
    e(f"v_mov_b32 v{vThr}, 0x10000")
    e(f"s_add_u32 s{sBld}, s{sBld}, 4")
    e("s_nop 0")
    e(f"s_add_u32 s{sTmp}, s{sT2}, 31")
    e(f"s_sub_u32 s{sT3}, s{sT3}, s{sT2}")
    e(f"s_lshr_b32 s{sTmp}, s{sTmp}, 5")
    e(f"s_max_u32 s{sTmp}, s{sTmp}, 1")
    e(f"s_add_u32 s{sPos}, s{sPos}, s{sTmp}")
    e(f"s_bitset1_b64 s[{sF}:{sF + 1}], s{sPos}")
    e(f"s_lshl_b32 s{sTmp}, s{sTmp}, 7")
    e(f"s_add_u32 s{sLast}, s{sLast}, s{sTmp}")
    e(f"v_add_u32 v{vP}, s{sLast}, v{vN4}")
    e(f"s_lshl_b32 s{sT2}, s{sT2}, 2")
    e(f"s_sub_u32 s{sT2}, s{sTmp}, s{sT2}")
    e(f"s_add_u32 s{sT3}, s{sT3}, 31")
    e(f"s_lshr_b32 s{sT3}, s{sT3}, 5")
    e(f"s_max_u32 s{sT3}, s{sT3}, 1")
    e(f"s_add_u32 s{sPos}, s{sPos}, s{sT3}")
    e(f"s_lshl_b32 s{sT3}, s{sT3}, 7")
    e(f"s_add_u32 s{sLast}, s{sLast}, s{sT3}")
    e("s_mov_b32 exec_lo, 0")
    e(f"v_add_u32 v{vA}, s{sT2}, v{vA}")
    e(f"v_add_u32 v{vP}, s{sLast}, v{vN4}")
    e("s_mov_b32 exec_lo, -1")
    c("pad entries in the last tile of both rows, then the real ones")
    e(f"ds_write_b32 v{vP}, v{vPad}")
    for q in range(8):
        e(f"s_mov_b64 exec, s[{sC + 2 * q}:{sC + 2 * q + 1}]")
        e(f"ds_write_b32 v{vA}, v{E + q}")
        if q < 7:
            e(f"v_add_u32 v{vA}, 4, v{vA}")
    e("s_mov_b64 exec, -1")
    e(f"s_bitset1_b64 s[{sF}:{sF + 1}], s{sPos}")
    e(f"s_add_u32 s{sLpos}, s{sLast}, 128")
    e(f"s_lshl_b64 s[{sF1}:{sF1 + 1}], s[{sF}:{sF + 1}], 1")
    e(f"s_sub_u32 s{sTmp}, s{sPos}, {R}")
    e(f"s_bitset1_b64 s[{sG}:{sG + 1}], s{sTmp}")
    c("the next pass is due at the step that reads the positions of a tile that is not listed yet")
    e(f"s_sub_u32 s{sTmp}, s{sTmp}, {1 + a.margin}")
    e(f"s_cmp_lt_u32 s{sBld}, 16")
    e(f"s_cselect_b32 s{sThr}, s{sTmp}, 64")
    e("s_cbranch_scc1 L_bldR")
    c("pad tiles behind the last list")
    e(f"v_lshl_add_u32 v{vP}, v{vJ}, 2, s{sLpos}")
    for k in range(NPAD):
        e(f"ds_write_b32 v{vP}, v{vPad} offset:{256 * k}")
    g.label("L_bldR")
    e(f"s_setpc_b64 {R_}")

    g.label("L_bldA")
    g.waitvm("MK3")
    g.label("L_bldA1")
    e(f"s_call_b64 {R_}, L_bld")
    e(f"s_cmp_lt_i32 s{sThr}, {-a.margin}")
    e("s_cbranch_scc1 L_bldA")
    c("tiles 0..3 are listed: gather tiles 1 and 2")
    e(f"ds_read_u16 v{TT + 1}, v{vLI} offset:128")
    e(f"ds_read_u16 v{TT + 2}, v{vLI} offset:256")
    e(f"ds_read_u16 v{vIdx}, v{vLI} offset:384")
    for t in (1, 2):
        if t == 2:
            switch(63)
        e(f"s_waitcnt lgkmcnt({3 - t})")
        e(f"v_lshl_add_u32 v{TT + t}, v{TT + t}, 5, v{vHalf16}")
        gather(RH + 4 * (t % 2), TT + t)
        g.vmq.append("G")
    e("s_setprio 1")
    c("B operand of the transposing MFMAs: lane n < 16 picks hidden unit k(n), so that a lane's 8 results are 8 consecutive units")
    e(f"v_lshlrev_b32 v{t0}, 3, v{vHalf}")
    e(f"v_sub_u32 v{t0}, v{vK}, v{t0}")
    e(f"v_and_b32 v{t1}, 1, v{t0}")
    e(f"v_lshlrev_b32 v{t1}, 4, v{t1}")
    e(f"v_mov_b32 v{t2}, 0x3f80")
    e(f"v_lshlrev_b32 v{t1}, v{t1}, v{t2}")
    e(f"v_lshrrev_b32 v{t0}, 1, v{t0}")
    for q in range(4):
        e(f"v_cmp_eq_u32 s[{sC + 2 * q}:{sC + 2 * q + 1}], {q}, v{t0}")
    c("rows 16..31 of the tile MFMA's A operand are the identity: seed 1/scale, the scale is applied later")
    e(f"v_mov_b32 v{t0}, 0xbf317218")
    e(f"s_mov_b32 s{sLane}, 0x10000")
    e(f"s_mov_b32 s{sLane + 1}, 0x1000000")
    for r in range(8):
        e(f"v_cndmask_b32 v{CI + r}, 0, v{t0}, s[{sLane}:{sLane + 1}]")
        if r < 7:
            e(f"s_lshl_b64 s[{sLane}:{sLane + 1}], s[{sLane}:{sLane + 1}], 1")
    for r in range(4):
        e(f"v_mov_b64 {vr(CI + 8 + 2 * r, 2)}, 0")
    for q in range(4):
        e(f"v_cndmask_b32 v{I16 + q}, 0, v{t1}, s[{sC + 2 * q}:{sC + 2 * q + 1}]")
    pad(1)
    c("LDS slots of the rows: c (64 B) and t (64 B) in f32")
    e(f"s_mul_i32 s{sTmp}, s{sWave}, {LDSW}")
    e(f"s_add_u32 s{sTmp}, s{sTmp}, {LIST}")
    e(f"v_lshl_add_u32 v{vLC}, v{vHalf}, 5, s{sTmp}")
    e(f"v_and_b32 v{t0}, 7, v{vN}")
    e(f"v_lshl_add_u32 v{vTmp}, v{t0}, 7, v{vLC}")

    X, Y = P, CT
    g.waitvm("wad", "wbc")
    c("Y = Wb^T | Wc^T, X = Wa^T | Wd^T")
    e(f"v_mfma_f32_32x32x16_bf16 {vr(Y, 16)}, {vr(WBC, 4)}, {vr(I16, 4)}, 0")
    e(f"v_mfma_f32_32x32x16_bf16 {vr(X, 16)}, {vr(WAD, 4)}, {vr(I16, 4)}, {vr(CI, 16)}")
    g.waitvm("t", "b1")
    TF = D1
    for q in range(4):
        e(f"v_lshlrev_b32 v{TF + 2 * q}, 16, v{T + q}")
        e(f"v_and_b32 v{TF + 2 * q + 1}, 0xffff0000, v{T + q}")
    e(f"ds_write_b128 v{vTmp}, {vr(TF, 4)} offset:64")
    e(f"ds_write_b128 v{vTmp}, {vr(TF + 4, 4)} offset:80")
    e(f"ds_read_b128 {vr(TT, 4)}, v{vLC} offset:64")
    e(f"ds_read_b128 {vr(TT + 4, 4)}, v{vLC} offset:80")
    for q in range(4):
        e(f"v_lshlrev_b32 v{B1F + 2 * q}, 16, v{B1P + q}")
        e(f"v_and_b32 v{B1F + 2 * q + 1}, 0xffff0000, v{B1P + q}")
    for q in range(4):
        e(f"v_cvt_pk_bf16_f32 v{A + q}, v{Y + 2 * q}, v{Y + 2 * q + 1}")
    for q in range(4):
        e(f"v_cvt_pk_bf16_f32 v{B1P + q}, -v{Y + 8 + 2 * q}, -v{Y + 9 + 2 * q}")
    c("P = -log2e * (Wa + Wc)^T (identity in the upper rows), Q = -log2e * Wd^T")
    for q in range(4):
        e(f"v_pk_add_f32 {vr(X + 2 * q, 2)}, {vr(X + 2 * q, 2)}, {vr(Y + 8 + 2 * q, 2)}")
    e(f"s_mov_b32 s{sScale}, 0xbfb8aa3b")
    for q in range(8):
        e(f"v_pk_mul_f32 {vr(X + 2 * q, 2)}, {vr(X + 2 * q, 2)}, s[{sScale}:{sScale + 1}] op_sel_hi:[1,0]")
    c("c = Wb^T t - Wc^T t + b1 for the 8 rows (columns)")
    e(f"v_mfma_f32_32x32x16_bf16 {vr(Y, 16)}, {vr(A, 4)}, {vr(T, 4)}, {vr(B1F, 16)}")
    e(f"v_mfma_f32_32x32x16_bf16 {vr(Y, 16)}, {vr(B1P, 4)}, {vr(T, 4)}, {vr(Y, 16)}")
    c("output offset: row j & 3 of a group of four, the element that the reduction leaves in lane quad j >> 2")
    o0 = vSt
    e(f"v_and_b32 v{vOut}, 8, v{vJ}")
    e(f"v_bfe_u32 v{o0}, v{vJ}, 5, 1")
    e(f"v_lshl_add_u32 v{vOut}, v{o0}, 2, v{vOut}")
    e(f"v_bfe_u32 v{o0}, v{vJ}, 2, 1")
    e(f"v_lshl_add_u32 v{vOut}, v{o0}, 1, v{vOut}")
    e(f"v_bfe_u32 v{o0}, v{vJ}, 4, 1")
    e(f"v_add_lshl_u32 v{vOut}, v{vOut}, v{o0}, 1")
    e(f"v_mul_u32_u24 v{o0}, {hex(TS // 2 + 32)}, v{vJ}")
    e(f"v_and_b32 v{o0}, {hex(TS + 32)}, v{o0}")
    e(f"v_or_b32 v{vOut}, v{vOut}, v{o0}")
    e(f"s_add_u32 s{sO}, s18, s22")
    e(f"s_addc_u32 s{sO + 1}, s19, 0")
    e(f"s_mov_b32 s{sO + 2}, {3 * TS + 64}")
    e(f"s_mov_b32 s{sO + 3}, 0x20000")
    for q in range(4):
        e(f"v_mov_b64 {vr(ACC + 2 * q, 2)}, 0")
    e(f"v_mov_b32 v{vMk}, 0")
    g.waitvm("w2", "b2", extra=" lgkmcnt(0)")
    for q in range(4):
        e(f"v_pk_mul_f32 {vr(Y + 2 * q, 2)}, {vr(Y + 2 * q, 2)}, s[{sScale}:{sScale + 1}] op_sel_hi:[1,0]")
    e(f"ds_write_b128 v{vTmp}, {vr(Y, 4)}")
    e(f"ds_write_b128 v{vTmp}, {vr(Y + 4, 4)} offset:16")
    for r in range(4):
        e(f"v_mov_b64 {vr(CT + 8 + 2 * r, 2)}, 0")
    e("s_waitcnt lgkmcnt(0)")
    e(f"ds_read_b128 {vr(CT, 4)}, v{vLC}")
    e(f"ds_read_b128 {vr(CT + 4, 4)}, v{vLC} offset:16")
    mkA()
    e(f"ds_read_b128 {vr(TT, 4)}, v{vLC} offset:{128 + 64}")
    e(f"ds_read_b128 {vr(TT + 4, 4)}, v{vLC} offset:{128 + 80}")
    for r in range(1, 4):
        e(f"v_mov_b32 v{C3 + r}, v{C3}")
    e(f"s_mov_b32 s{sLane}, 0x11111111")
    e(f"s_mov_b32 s{sLane + 1}, 0x11111111")
    e(f"s_mov_b32 s{sRow}, 0")
    e(f"s_mov_b32 s{sOoff}, {2 * TS}")
    e(f"s_mov_b32 s{sI}, 0")
    e(f"s_mov_b32 s{sNew}, 1")
    if a.stamps == 1:
        e("s_memrealtime s[98:99]")
    e("s_waitcnt lgkmcnt(0)")
    if a.stamps == 3:
        e("s_memrealtime s[100:101]")
        e("s_waitcnt lgkmcnt(0)")
        e(f"v_mov_b32 v{NV}, 0")
        e(f"v_writelane_b32 v{NV}, s100, 0")
        e(f"v_writelane_b32 v{NV}, s96, 63")
    if a.probe == 2:
        e("s_memrealtime s[100:101]")
        e("s_waitcnt lgkmcnt(0)")
    mfma1(T0, D0)
    c("the workgroup dispatched second onto a CU lags behind: it keeps the higher priority (speed only)")
    e("s_bitcmp1_b32 s2, 5")
    e("s_cbranch_scc1 L_yp")
    e("s_setprio 0")
    g.label("L_yp")
    pad(2)
    e("s_nop 8")

    def S1(Xb):
        for r in range(8):
            e(f"v_exp_f32 v{Xb + r}, v{Xb + r}")

    def step5(Yb):
        e(f"v_mul_f32 v{Yb + 4}, v{Yb + 4}, v{vMk}")
        for q in range(4):
            e(f"v_pk_fma_f32 {vr(ACC + 2 * q, 2)}, {vr(Yb + 8 + 2 * q, 2)}, {vr(Yb + 4, 2)}, {vr(ACC + 2 * q, 2)} op_sel_hi:[1,0,1]")

    def S2(p, Yb):
        e(f"s_bitcmp1_b64 s[{sF1}:{sF1 + 1}], s{sI}")
        e("s_waitcnt lgkmcnt(0)")
        if a.stamps == 3:
            e(f"s_mov_b32 m0, s{sI}")
            e(f"v_writelane_b32 v{NV}, s90, m0")
        step5(Yb)
        e(f"s_cbranch_scc1 L_red{p}")
        g.label(f"L_rred{p}")

    def S38(p, Xb, Yb):
        buf = RH + 4 * ((p + 1) % 2)
        e(f"s_bitcmp1_b64 s[{sF}:{sF + 1}], s{sI}")
        for q in range(4):
            e(f"v_pk_add_f32 {vr(Xb + 2 * q, 2)}, {vr(Xb + 2 * q, 2)}, 1.0 op_sel_hi:[1,0]")
        e(f"s_cbranch_scc1 L_new{p}")
        g.label(f"L_rnew{p}")
        e(f"v_lshl_add_u32 v{vOff}, v{vIdx}, 5, v{vHalf16}")
        switch(f"s{sI}")
        e("s_waitcnt vmcnt(1)")
        if a.stamps == 3:
            e("s_memrealtime s[90:91]")
        mfma1(buf, Yb)
        gather(buf)
        e(f"s_cmp_ge_i32 s{sI}, s{sThr}")
        for r in range(8):
            e(f"v_rcp_f32 v{Xb + r}, v{Xb + r}")
        e(f"s_cbranch_scc1 L_sbld{p}")
        g.label(f"L_rbld{p}")
        for q in range(4):
            e(f"v_cvt_pk_bf16_f32 v{Xb + q}, v{Xb + 2 * q}, v{Xb + 2 * q + 1}")
        e(f"ds_read_u16 v{vIdx}, v{vLI} offset:{(p + 4) * 128}")
        e(f"ds_read_u16_d16_hi v{vMk}, v{vLI} offset:{p * 128 + 2}")
        e(f"v_mfma_f32_16x16x32_bf16 {vr(Xb + 4, 4)}, {vr(A3, 4)}, {vr(Xb, 4)}, {vr(C3, 4)}")
        e(f"s_add_u32 s{sI}, s{sI}, 1")
        if p == 1:
            e(f"v_add_u32 v{vLI}, 256, v{vLI}")

    c("step i: sigmoids of tile i, weighted sum of tile i-1, MFMA of tile i+1, gather of tile i+3")
    S1(D0)
    g.label("L_loop")
    S38(0, D0, D1)
    S1(D1)
    S2(1, D0)
    S38(1, D1, D0)
    S1(D0)
    S2(0, D1)
    e(f"s_cmp_lt_u32 s{sI}, 60")
    e("s_cbranch_scc1 L_loop")
    e("s_endpgm")
    pad(3, skip=False)

    for p in range(2):
        g.label(f"L_sbld{p}")
        e(f"s_call_b64 {R_}, L_bld")
        e(f"s_branch L_rbld{p}")

    dpp = "row_mask:0xf bank_mask:"

    def reduce_row(final):
        for r in range(4):
            e(f"v_add_f32_dpp v{ACC + r}, v{ACC + r}, v{ACC + r} row_ror:8 {dpp}0xf")
        for r in range(4):
            e(f"v_add_f32_dpp v{ACC + r}, v{ACC + 4 + r}, v{ACC + 4 + r} row_ror:8 {dpp}0xc")
        for r in range(2):
            e(f"v_add_f32_dpp v{ACC + r}, v{ACC + r}, v{ACC + r} row_half_mirror {dpp}0xf")
        for r in range(2):
            e(f"v_add_f32_dpp v{ACC + r}, v{ACC + 2 + r}, v{ACC + 2 + r} row_half_mirror {dpp}0xa")
        if final:
            e("s_nop 1")
        else:
            e(f"v_mov_b64 {vr(ACC + 4, 2)}, 0")
            e(f"v_mov_b64 {vr(ACC + 6, 2)}, 0")
        e(f"v_permlane16_swap_b32 v{ACC}, v{ACC + 1}")
        e("s_nop 0" if final else f"v_mov_b64 {vr(ACC + 2, 2)}, 0")
        e(f"v_add_f32 v{vSt}, v{ACC}, v{ACC + 1}")
        if final:
            e("s_nop 1")
        else:
            e(f"v_mov_b64 {vr(ACC, 2)}, 0")
            e(f"s_add_u32 s{sRow}, s{sRow}, 1")
        e(f"v_add_f32_dpp v{vSt}, v{vSt}, v{vSt} quad_perm:[1,0,3,2] {dpp}0xf")
        if final:
            e("s_nop 1")
        else:
            e("s_nop 0")
            e(f"s_cmp_eq_u32 s{sRow}, 4")
        e(f"v_add_f32_dpp v{vSt}, v{vSt}, v{vSt} quad_perm:[2,3,0,1] {dpp}0xf")
        e(f"v_cndmask_b32 v{vRes}, v{vRes}, v{vSt}, s[{sLane}:{sLane + 1}]")

    def new_row(p):
        c("the next tile starts a new row: switch A and c")
        g.label(f"L_new{p}")
        e(f"s_cmp_eq_u32 s{sNew}, {NB}")
        e(f"s_cbranch_scc1 L_last{p}")
        e(f"v_add_u32 v{vLC}, 128, v{vLC}")
        e(f"ds_read_b128 {vr(CT, 4)}, v{vLC}")
        e(f"ds_read_b128 {vr(CT + 4, 4)}, v{vLC} offset:16")
        mkA()
        e(f"ds_read_b128 {vr(TT, 4)}, v{vLC} offset:{128 + 64}")
        e(f"ds_read_b128 {vr(TT + 4, 4)}, v{vLC} offset:{128 + 80}")
        e(f"s_add_u32 s{sNew}, s{sNew}, 1")
        e("s_waitcnt lgkmcnt(2)")
        e(f"s_branch L_rnew{p}")

    def red_row(p):
        c("a row is complete: sum the 32 columns; lane j keeps row j & 3")
        g.label(f"L_red{p}")
        reduce_row(False)
        e(f"s_cbranch_scc1 L_four{p}")
        e(f"s_lshl_b64 s[{sLane}:{sLane + 1}], s[{sLane}:{sLane + 1}], 1")
        e(f"s_branch L_rred{p}")
        g.label(f"L_four{p}")
        e(f"v_mov_b32 v{vTmp}, v{vRes}")
        if a.probe == 5:
            e("s_memrealtime s[100:101]")
            e("s_waitcnt lgkmcnt(0)")
        e(f"s_lshr_b64 s[{sLane}:{sLane + 1}], s[{sLane}:{sLane + 1}], 3")
        e(f"s_branch L_rred{p}")

    for p in range(2):
        new_row(p)
        red_row(p)

    c("==== the last tile of the wave: no further tile to overlap with")
    for p, Xb in ((1, D1), (0, D0)):
        g.label(f"L_last{p}")
        e(f"ds_read_u16_d16_hi v{vMk}, v{vLI} offset:{p * 128 + 2}")
        for r in range(8):
            e(f"v_rcp_f32 v{Xb + r}, v{Xb + r}")
        e("s_nop 0")
        for q in range(4):
            e(f"v_cvt_pk_bf16_f32 v{Xb + q}, v{Xb + 2 * q}, v{Xb + 2 * q + 1}")
        e("s_nop 1")
        e(f"v_mfma_f32_16x16x32_bf16 {vr(Xb + 4, 4)}, {vr(A3, 4)}, {vr(Xb, 4)}, {vr(C3, 4)}")
        e("s_nop 6")
        e("s_waitcnt lgkmcnt(0)")
        step5(Xb)
        e("s_branch L_fin" if p else "s_nop 0")
    g.label("L_fin")
    reduce_row(True)
    e(f"v_cvt_pk_bf16_f32 v{vTmp}, v{vTmp}, v{vRes}")
    e(f"buffer_store_short v{vTmp}, v{vOut}, s[{sO}:{sO + 3}], 0 offen")
    e(f"buffer_store_short_d16_hi v{vTmp}, v{vOut}, s[{sO}:{sO + 3}], s{sOoff} offen")
    if a.stamps:
        e(f"s_lshl2_add_u32 s3, s23, s{sWave}")
        e(f"s_mov_b32 s{sDbg + 2}, 0x1000000")
        e(f"s_mov_b32 s{sDbg + 3}, 0x20000")
        e("s_memrealtime s[90:91]")
    if a.stamps == 3:
        e("s_lshl_b32 s78, s3, 8")
        e("v_lshl_add_u32 v12, v0, 2, s78")
        e("s_waitcnt lgkmcnt(0)")
        e(f"v_writelane_b32 v{NV}, s90, 62")
        e(f"v_writelane_b32 v{NV}, s{sPos}, 61")
        e(f"buffer_store_dword v{NV}, v12, s[{sDbg}:{sDbg + 3}], 0 offen")
    if a.stamps == 1:
        e("s_waitcnt lgkmcnt(0)")
        e("v_mov_b32 v8, s96")
        e("v_mov_b32 v9, s98")
        e("v_mov_b32 v10, s98")
        e("v_mov_b32 v11, s90")
        e("s_lshl_b32 s78, s3, 4")
        e("v_mov_b32 v12, s78")
        e(f"buffer_store_dwordx4 v[8:11], v12, s[{sDbg}:{sDbg + 3}], 0 offen")
    e("s_memrealtime s[90:91]")
    e("s_waitcnt lgkmcnt(0)")
    e("s_sub_u32 s98, s90, s96" if a.probe == 1 else "s_sub_u32 s98, s100, s96" if a.probe else "s_mov_b32 s98, 0")
    e("s_min_u32 s98, s98, 5000")
    e(f"s_mul_i32 s98, s98, {a.probek}")
    e("s_mov_b32 s99, s90")
    g.label("L_spin")
    e("s_sleep 2")
    e("s_memrealtime s[90:91]")
    e("s_waitcnt lgkmcnt(0)")
    e("s_sub_u32 s90, s90, s99")
    e("s_cmp_lt_u32 s90, s98")
    e("s_cbranch_scc1 L_spin")
    g.label("L_end")
    e("s_endpgm")
    place_pad0(g)

    out = HEADER
    out += f"; @launch grid=({NWG},1,1) block=({64 * WPG},1,1) lds={LDSW * WPG}\n"
    out += f""".amdgcn_target "amdgcn-amd-amdhsa--gfx950"
.text
.globl {NAME}_kernel
.p2align 8
.type {NAME}_kernel,@function
{NAME}_kernel:
"""
    out += "\n".join(g.L) + "\n"
    out += f""".section .rodata,"a"
.p2align 6
.amdhsa_kernel {NAME}_kernel
  .amdhsa_next_free_vgpr 256
  .amdhsa_next_free_sgpr 102
  .amdhsa_accum_offset 256
  .amdhsa_group_segment_fixed_size 0
  .amdhsa_kernarg_size 80
  .amdhsa_user_sgpr_count 2
  .amdhsa_user_sgpr_kernarg_segment_ptr 1
  .amdhsa_system_sgpr_workgroup_id_x 1
.end_amdhsa_kernel
"""
    return out


if __name__ == "__main__":
    p = argparse.ArgumentParser()
    p.add_argument("-o", default=f"cdna_kernels/{NAME}.s")
    p.add_argument("--margin", type=int, default=0)
    p.add_argument("--stamps", type=int, default=0)
    p.add_argument("--probe", type=int, default=0)
    p.add_argument("--probek", type=int, default=10)
    a = p.parse_args()
    open(a.o, "w").write(build(a))
```
